```python
import torch

def _softmax(x, axis=-1):
    return torch.softmax(x, dim=axis)
def _gelu(x):
    return torch.nn.functional.gelu(x, approximate="tanh")
def _silu(x):
    return torch.nn.functional.silu(x)
def _sigmoid(x):
    return torch.sigmoid(x)
def _layernorm(x, axis=-1, eps=1e-5):
    m = x.mean(dim=axis, keepdim=True)
    v = x.var(dim=axis, keepdim=True, unbiased=False)
    return (x - m) / torch.sqrt(v + eps)
def _scatter_add(tgt, idx, src, axis=0):
    return tgt.clone().index_add_(axis, idx, src)
def _segment_sum(src, seg, n):
    out = torch.zeros((n,) + src.shape[1:], dtype=src.dtype)
    return out.index_add_(0, seg, src)
def _pad(x, pw):
    flat = tuple(v for pair in reversed(pw) for v in pair)
    return torch.nn.functional.pad(x, flat)

kernel_name = 'concat_heads__mha_block_cached__mha_block_cached__near_ridge'

def setup_inputs():

    _w = (lambda a: (lambda t: t.to(torch.bfloat16) if t.is_floating_point() else t)(torch.as_tensor(a)))
    def _A_setup():
        B, Sq, D = 16, 128, 640
        H, Sk, Dh = 32, 512, 128
        return {
            "x": _w((lambda *s: torch.randn(*s, dtype=torch.bfloat16) * 0.8)(B, Sq, D)),
            "k_cache": _w((lambda *s: torch.randn(*s, dtype=torch.bfloat16) * 0.8)(B, H, Sk, Dh)),
            "v_cache": _w((lambda *s: torch.randn(*s, dtype=torch.bfloat16) * 0.05)(B, H, Sk, Dh)),
            "wq": _w((lambda *s: torch.randn(*s, dtype=torch.bfloat16) * 0.8)(D, H * Dh) * (D ** -0.5)),
            "wo": _w((lambda *s: torch.randn(*s, dtype=torch.bfloat16) * 0.05)(H * Dh, D) * ((H * Dh) ** -0.5)),
        }
    _A_in = _A_setup()

    def _B_setup():
        B, Sq, D = 16, 128, 640
        H, Sk, Dh = 32, 512, 128
        return {
            "x": _w((lambda *s: torch.randn(*s, dtype=torch.bfloat16) * 0.8)(B, Sq, D)),
            "k_cache": _w((lambda *s: torch.randn(*s, dtype=torch.bfloat16) * 0.8)(B, H, Sk, Dh)),
            "v_cache": _w((lambda *s: torch.randn(*s, dtype=torch.bfloat16) * 0.05)(B, H, Sk, Dh)),
            "wq": _w((lambda *s: torch.randn(*s, dtype=torch.bfloat16) * 0.8)(D, H * Dh) * (D ** -0.5)),
            "wo": _w((lambda *s: torch.randn(*s, dtype=torch.bfloat16) * 0.05)(H * Dh, D) * ((H * Dh) ** -0.5)),
        }
    _B_in = _B_setup()

    return {
        "A_x": _A_in["x"],
        "A_k_cache": _A_in["k_cache"],
        "A_v_cache": _A_in["v_cache"],
        "A_wq": _A_in["wq"],
        "A_wo": _A_in["wo"],
        "B_x": _B_in["x"],
        "B_k_cache": _B_in["k_cache"],
        "B_v_cache": _B_in["v_cache"],
        "B_wq": _B_in["wq"],
        "B_wo": _B_in["wo"],
    }

def reference(A_x, A_k_cache, A_v_cache, A_wq, A_wo, B_x, B_k_cache, B_v_cache, B_wq, B_wo):
    def _A_ref(x, k_cache, v_cache, wq, wo):
        B, Sq, D = x.shape
        H, Dh = 32, 128
        q = (lambda x, *d: x.permute(*d))((x @ wq).reshape(B, Sq, H, Dh), 0, 2, 1, 3)
        scores = torch.einsum("bhqd,bhkd->bhqk", q, k_cache) * (Dh ** -0.5)
        p = _softmax(scores, axis=-1)
        o = torch.einsum("bhqk,bhkd->bhqd", p, v_cache)
        return (lambda x, *d: x.permute(*d))(o, 0, 2, 1, 3).reshape(B, Sq, H * Dh) @ wo

    def _B_ref(x, k_cache, v_cache, wq, wo):
        B, Sq, D = x.shape
        H, Dh = 32, 128
        q = (lambda x, *d: x.permute(*d))((x @ wq).reshape(B, Sq, H, Dh), 0, 2, 1, 3)
        scores = torch.einsum("bhqd,bhkd->bhqk", q, k_cache) * (Dh ** -0.5)
        p = _softmax(scores, axis=-1)
        o = torch.einsum("bhqk,bhkd->bhqd", p, v_cache)
        return (lambda x, *d: x.permute(*d))(o, 0, 2, 1, 3).reshape(B, Sq, H * Dh) @ wo

    a = _A_ref(A_x, A_k_cache, A_v_cache, A_wq, A_wo)
    b = _B_ref(B_x, B_k_cache, B_v_cache, B_wq, B_wo)
    return torch.concatenate([a, b], axis=-1)
```

```python
import re

def R(kind, lo, n=1):
    return [(kind, lo + i) for i in range(n)]

def parse_regs(tok):
    tok = tok.strip()
    tok = tok.lstrip('-').strip('|')
    m = re.fullmatch(r'([vas])\[(\d+):(\d+)\]', tok)
    if m:
        return R(m.group(1), int(m.group(2)), int(m.group(3)) - int(m.group(2)) + 1)
    m = re.fullmatch(r'([vas])(\d+)', tok)
    if m:
        return [(m.group(1), int(m.group(2)))]
    if tok in ('vcc', 'm0', 'exec', 'scc'):
        return [(tok, 0)]
    return []

TRANS = ('v_exp_f32', 'v_rcp_f32', 'v_log_f32', 'v_rsq_f32', 'v_sqrt_f32')

class Ins:
    __slots__ = ('text', 'kind', 'rd', 'wr', 'srcc', 'tag', 'ws', 'data')
    def __init__(self, text, tag=None):
        self.text = text
        self.tag = tag
        op, _, rest = text.partition(' ')
        ops = [o.strip() for o in rest.split(',')] if rest else []
        if ops:
            ops[-1] = ops[-1].split(' ')[0]
        self.srcc = []
        self.data = []
        self.ws = 1
        if op.startswith('v_mfma'):
            self.kind = 'mfma'
            self.wr = parse_regs(ops[0]); self.rd = parse_regs(ops[1]) + parse_regs(ops[2])
            self.srcc = parse_regs(ops[3])
        elif op.startswith('v_cmp'):
            self.kind = 'valu'
            self.wr = parse_regs(ops[0]); self.rd = sum((parse_regs(o) for o in ops[1:]), [])
        elif op.startswith('v_permlane'):
            self.kind = 'perm'
            self.wr = parse_regs(ops[0]) + parse_regs(ops[1]); self.rd = list(self.wr)
        elif op.startswith('v_readfirstlane'):
            self.kind = 'rfl'
            self.wr = parse_regs(ops[0]); self.rd = parse_regs(ops[1])
        elif op.startswith('v_'):
            self.kind = 'trans' if op in TRANS else 'valu'
            self.wr = parse_regs(ops[0]); self.rd = sum((parse_regs(o) for o in ops[1:]), [])
            if op.startswith('v_cndmask') and len(ops) == 3:
                self.rd += [('vcc', 0)]
        elif op.startswith('ds_read'):
            self.kind = 'lds'
            self.wr = parse_regs(ops[0]); self.rd = parse_regs(ops[1])
        elif op.startswith('buffer_load') and text.rstrip().endswith(' lds'):
            self.kind = 'dma'
            self.wr = []; self.rd = sum((parse_regs(o) for o in ops), []) + [('m0', 0)]
        elif op.startswith('buffer_load'):
            self.kind = 'vload'
            self.wr = parse_regs(ops[0]); self.rd = sum((parse_regs(o) for o in ops[1:]), [])
        elif op.startswith('buffer_store'):
            self.kind = 'vstore'
            self.wr = []; self.rd = sum((parse_regs(o) for o in ops), [])
            self.data = parse_regs(ops[0])
        elif op == 's_nop':
            self.kind = 'nop'; self.wr = []; self.rd = []; self.ws = int(ops[0]) + 1
        elif op.startswith('s_'):
            self.kind = 'salu'
            if op.startswith(('s_cmp', 's_cbranch', 's_branch', 's_waitcnt', 's_barrier', 's_endpgm', 's_setprio')):
                self.wr = []; self.rd = sum((parse_regs(o) for o in ops), [])
            else:
                self.wr = parse_regs(ops[0]); self.rd = sum((parse_regs(o) for o in ops[1:]), [])
        else:
            raise ValueError(text)

VALUISH = ('valu', 'trans', 'perm', 'rfl')

def need_ws(p, c):
    n = 0
    pw = set(p.wr)
    crd = set(c.rd); cw = set(c.wr); cc = set(c.srcc)
    if p.kind in VALUISH:
        if c.kind == 'mfma' and pw & (crd | cc): n = max(n, 2)
        if c.kind == 'perm' and pw & crd: n = max(n, 2)
        if c.kind == 'rfl' and pw & crd: n = max(n, 1)
        if p.kind == 'trans' and c.kind in VALUISH + ('vstore',) and pw & crd: n = max(n, 1)
        sg = {r for r in pw if r[0] in ('s', 'vcc')}
        if sg:
            if c.kind in ('dma', 'vload', 'vstore') and sg & crd: n = max(n, 5)
            if c.kind in VALUISH and sg & crd: n = max(n, 2)
    if p.kind == 'mfma':
        if c.kind == 'mfma':
            if pw & crd: n = max(n, 12)
            if pw & cc and p.wr != c.srcc: n = max(n, 10)
        elif c.kind in VALUISH + ('lds', 'dma', 'vload', 'vstore'):
            if pw & (crd | cw): n = max(n, 12)
        if c.kind in VALUISH and set(p.srcc) & cw: n = max(n, 7)
    if p.kind == 'salu' and ('m0', 0) in pw and c.kind == 'dma': n = max(n, 1)
    if p.kind == 'vstore' and len(p.data) >= 3 and set(p.data) & cw: n = max(n, 2)
    return n

class Em:
    def __init__(self):
        self.out = []
        self.hist = []
        self.lq = []
        self.vq = []
        self.npad = 0
    def raw(self, s):
        self.out.append(s)
    def label(self, name):
        self.out.append(name + ':')
    def comment(self, s):
        self.out.append('    ; ' + s)
    def state(self):
        return (list(self.hist), list(self.lq), list(self.vq))
    def set_state(self, st):
        self.hist, self.lq, self.vq = list(st[0]), list(st[1]), list(st[2])
    def __call__(self, text, tag=None):
        c = Ins(text, tag)
        if c.kind == 'lds' and len(self.lq) >= 15:
            self('s_waitcnt lgkmcnt(11)'); self.lq = self.lq[-11:]
        d = 0; pad = 0
        for p in reversed(self.hist):
            if d >= 12: break
            n = need_ws(p, c)
            if n > d: pad = max(pad, n - d)
            d += p.ws
        if pad:
            self.npad += pad
            nop = Ins('s_nop %d' % (pad - 1))
            self.out.append('    ' + nop.text); self.hist.append(nop)
        self.out.append('    ' + text)
        self.hist.append(c); self.hist = self.hist[-32:]
        if c.kind == 'lds': self.lq.append(tag)
        if c.kind in ('dma', 'vload', 'vstore'): self.vq.append(tag)
    def wait_l(self, tags):
        idx = max((i for i, t in enumerate(self.lq) if t in tags), default=-1)
        if idx < 0: return
        n = len(self.lq) - 1 - idx
        if n > 15: n = 15; idx = len(self.lq) - 16
        self('s_waitcnt lgkmcnt(%d)' % n)
        self.lq = self.lq[idx + 1:]
    def wait_v(self, tags):
        idx = max((i for i, t in enumerate(self.vq) if t in tags), default=-1)
        if idx < 0: return
        n = len(self.vq) - 1 - idx
        assert n <= 63, n
        self('s_waitcnt vmcnt(%d)' % n)
        self.vq = self.vq[idx + 1:]
    def text(self):
        return '\n'.join(self.out) + '\n'
```

```python
import sys, struct, math
sys.path.insert(0, 'gen')
from asmlib import Em

NAME = 'concat_heads__mha_block_cached__mha_block_cached__near_ridge'
K1 = NAME + '_kernel'
K2 = 'reduce_partials_kernel'

OPT = dict(stamp=0, nt=0, pf=6, nv=3)
for a in sys.argv[2:]:
    k, v = a.split('='); OPT[k] = int(v)

PITCH = 2112; SLOT = 8 * PITCH; NSLOT = 9; BIAS = 4096
LDS_BYTES = NSLOT * SLOT
PF = OPT['pf']; NV = OPT['nv']
def fbits(x): return struct.unpack('<I', struct.pack('<f', x))[0]

vTS, vTV, vKE, vKO = 1, 4, 7, 10
vON, vOV, vOK, vOWO = 13, 15, 17, 19
vST, vL, vRL = 21, 22, 23
vE = [24, 25, 26, 27]; vTA, vTB, vT0, vT1 = 28, 29, 30, 31
QB = 32; OACC = 64; SB = [128, 144]; NEGM = 160; PB = [176, 184]; QACC = 128
OB = [('a', 160), ('a', 192), ('v', 192), ('v', 224)]
AF = 224
sK, sV, sN, sWO, sX = 4, 8, 12, 16, 20
sWV, sKVH, sNO, sNH, sNT, sA, sB, sH, sTHR, sC = 24, 25, 26, 27, 28, 29, 30, 31, 32, 33

def vr(k, lo, n): return '%s[%d:%d]' % (k, lo, lo + n - 1)

PHANTOM = 11
def kind_of(pos):
    if pos >= 27: return ('G', pos - 27)
    if pos <= 9: return ('W', pos)
    if pos == 10: return ('X', 0)
    if pos == PHANTOM: return None
    return ('X', pos - 11)

class MF:
    def __init__(self, d, b, c, reads):
        self.d, self.b, self.c, self.reads = d, b, c, reads

def t_reads(base, slot, half, kb, T):
    off = (slot % 3) * SLOT + half * 1024 + kb * 4 * PITCH + T * 64
    a = 'v%d' % (base + slot // 3)
    return [('ds_read_b64_tr_b16', 0, 2, a, off), ('ds_read_b64_tr_b16', 2, 2, a, off + 512)]
def k_reads(slot, half, kk):
    off = (slot % 3) * SLOT + half * 1024 + (kk >> 1) * 64
    a = 'v%d' % ((vKO if kk & 1 else vKE) + slot // 3)
    return [('ds_read_b128', 0, 4, a, off)]

def qk(slot, half, t, c0):
    d = vr('v', SB[t & 1], 16)
    return [MF(d, vr('v', QB + 4 * kk, 4), (c0 if kk == 0 else d), k_reads(slot, half, kk)) for kk in range(8)]
def pv(slot, half, t):
    r = []
    for kb in range(2):
        for T in range(4):
            d = vr('v', OACC + 16 * T, 16)
            r.append(MF(d, vr('v', PB[t & 1] + 4 * kb, 4), ('0' if (t == 0 and kb == 0) else d),
                        t_reads(vTV, slot, half, kb, T)))
    return r

def mfmas(pos):
    k, i = kind_of(pos); slot = pos % NSLOT
    if k == 'W':
        order = [(kx, T) for kx in range(4) for T in range(4)]
        if i == 9: order = [(kx, T) for T in range(4) for kx in range(4)]
        r = []
        for kx, T in order:
            d = vr('v', QACC + 16 * T, 16)
            r.append(MF(d, vr('a', (4 * i + kx) * 4, 4), ('0' if (i == 0 and kx == 0) else d),
                        t_reads(vTS, slot, kx >> 1, kx & 1, T)))
        return r
    if k == 'G':
        c, ti = divmod(i, 8); acc = (QACC, OACC)[c & 1]
        ok, ob = OB[ti >> 1]
        r = []
        for kx in range(4):
            for T in range(4):
                d = vr('v', acc + 16 * T, 16)
                r.append(MF(d, vr(ok, ob + ((ti & 1) * 4 + kx) * 4, 4), ('0' if (ti == 0 and kx == 0) else d),
                            t_reads(vTS, slot, kx >> 1, kx & 1, T)))
        return r
    if i == 0: return qk(slot, 0, 0, '0') + qk(slot, 1, 1, '0')
    if i == 15: return pv(slot, 0, 14) + pv(slot, 1, 15)
    return qk(slot, 1, i + 1, vr('v', NEGM, 16)) + pv(slot, 0, i - 1)

def next_pos(pos):
    return pos + 2 if pos + 1 == PHANTOM else pos + 1

NT = ' nt' if OPT['nt'] else ''
def dma_tile(pos, in_g):
    slot = pos % NSLOT
    ins = ['s_add_u32 m0, s%d, %d' % (sWV, slot * SLOT)]
    def four(srd0, v0, so0, srd1, v1, so1, mod=''):
        return ['buffer_load_dwordx4 v%d, %s, s%d offen%s lds' % (v0, vr('s', srd0, 4), so0, mod),
                'buffer_load_dwordx4 v%d, %s, s%d offen offset:1024%s lds' % (v1, vr('s', srd1, 4), so1, mod),
                'buffer_load_dwordx4 v%d, %s, s%d offen offset:%d%s lds' % (v0 + 1, vr('s', srd0, 4), so0, PITCH, mod),
                'buffer_load_dwordx4 v%d, %s, s%d offen offset:%d%s lds' % (v1 + 1, vr('s', srd1, 4), so1, PITCH + 1024, mod)]
    if in_g:
        c, ti = divmod(pos - 27, 8)
        o = ti * 81920 + c * 256
        ins += ['s_mov_b32 s%d, %d' % (sA, o), 's_mov_b32 s%d, %d' % (sB, o + 40960 - 1024)]
        return ins, four(sN, vON, sA, sN, vON, sB), []
    if pos >= 27 or pos <= 9:
        ins += ['s_add_u32 s%d, s%d, s%d' % (sB, sNO, sNH)]
        return ins, four(sN, vON, sNO, sN, vON, sB), ['s_add_u32 s%d, s%d, s%d' % (sNO, sNO, sNT)]
    _, t = kind_of(pos)
    h0 = (sK, vOK, 0) if t == 0 else (sV, vOV, t - 1)
    h1 = (sV, vOV, 15) if t == 15 else (sK, vOK, t + 1)
    ins += ['s_add_u32 s%d, s%d, %d' % (sA, sKVH, h0[2] * 8192), 's_add_u32 s%d, s%d, %d' % (sB, sKVH, h1[2] * 8192 - 1024)]
    return ins, four(h0[0], h0[1], sA, h1[0], h1[1], sB, NT), []

def emit_reads(e, m, gi):
    f = AF + 4 * (gi % 8)
    for op, o, n, a, off in m.reads:
        e('%s %s, %s offset:%d' % (op, vr('a', f + o, n), a, off), tag=gi % 16)

def softmax_pairs(t):
    S = SB[t & 1]; P = PB[t & 1]; g = []
    for p in range(8):
        ea, eb = vE[(p & 1) * 2], vE[(p & 1) * 2 + 1]
        ex = ['v_exp_f32 v%d, v%d' % (ea, S + 2 * p), 'v_exp_f32 v%d, v%d' % (eb, S + 2 * p + 1)]
        if p == 0:
            rest = ['v_cvt_pk_bf16_f32 v%d, v%d, v%d' % (P + p, ea, eb), 'v_add_f32 v%d, v%d, v%d' % (vTA, ea, eb)]
        elif p == 1:
            rest = ['v_cvt_pk_bf16_f32 v%d, v%d, v%d' % (P + p, ea, eb), 'v_add_f32 v%d, v%d, v%d' % (vTB, ea, eb)]
        else:
            rest = ['v_add_f32 v%d, v%d, v%d' % (vTA, vTA, ea), 'v_cvt_pk_bf16_f32 v%d, v%d, v%d' % (P + p, ea, eb),
                    'v_add_f32 v%d, v%d, v%d' % (vTB, vTB, eb)]
        g.append((ex, rest))
    return g

def rowmax(S, dst):
    r = ['v_max3_f32 v%d, v%d, v%d, v%d' % (dst, S, S + 1, S + 2), 'v_max3_f32 v%d, v%d, v%d, v%d' % (vT1, S + 3, S + 4, S + 5)]
    for i in range(6, 16, 4):
        r.append('v_max3_f32 v%d, v%d, v%d, v%d' % (dst, dst, S + i, S + i + 1))
        if i + 2 < 16: r.append('v_max3_f32 v%d, v%d, v%d, v%d' % (vT1, vT1, S + i + 2, S + i + 3))
    r += ['v_max_f32 v%d, v%d, v%d' % (dst, dst, vT1), 'v_mov_b32 v%d, v%d' % (vT1, dst),
          'v_permlane32_swap_b32 v%d, v%d' % (dst, vT1), 'v_max_f32 v%d, v%d, v%d' % (dst, dst, vT1)]
    return r

RARE = []
def check(t):
    return ['v_add_f32 v%d, v%d, v%d' % (vTA, vTA, vTB), 'v_cmp_nge_f32 vcc, s%d, v%d' % (sTHR, vTA),
            ('RARE', t), 'v_add_f32 v%d, v%d, v%d' % (vL, vL, vTA)]

def emit_rare(e, t):
    S = SB[t & 1]; S2 = SB[(t + 1) & 1]
    e.label('L_rare%d' % t)
    e.hist = []
    e('s_nop 15')
    for s in rowmax(S, vT0): e(s)
    e('v_max_f32 v%d, 0, v%d' % (vT0, vT0))
    e('v_sub_f32 v%d, 0, v%d' % (vT1, vT0))
    e('v_exp_f32 v%d, v%d' % (vT1, vT1))
    for i in range(16): e('v_sub_f32 v%d, v%d, v%d' % (S + i, S + i, vT0))
    if t < 15:
        for i in range(16): e('v_sub_f32 v%d, v%d, v%d' % (S2 + i, S2 + i, vT0))
        for i in range(16): e('v_sub_f32 v%d, v%d, v%d' % (NEGM + i, NEGM + i, vT0))
    for i in range(64): e('v_mul_f32 v%d, v%d, v%d' % (OACC + i, OACC + i, vT1))
    e('v_mul_f32 v%d, v%d, v%d' % (vL, vL, vT1))
    for ex, rest in softmax_pairs(t):
        for s in ex + rest: e(s)
    e('v_add_f32 v%d, v%d, v%d' % (vTA, vTA, vTB))
    e('s_nop 3')
    e('s_branch L_back%d' % t)

def epilogue(h):
    ok, ob = OB[h]; r = []
    for T in range(4):
        for p in range(8):
            a = OACC + 16 * T + 2 * p
            r += ['v_mul_f32 v%d, v%d, v%d' % (a, a, vRL), 'v_mul_f32 v%d, v%d, v%d' % (a + 1, a + 1, vRL)]
            if ok == 'v':
                r.append('v_cvt_pk_bf16_f32 v%d, v%d, v%d' % (ob + 8 * T + p, a, a + 1))
            else:
                r += ['v_cvt_pk_bf16_f32 v%d, v%d, v%d' % (a, a, a + 1), 'v_accvgpr_write_b32 a%d, v%d' % (ob + 8 * T + p, a)]
    return r

def qconv(T):
    r = []
    for p in range(8):
        a = QACC + 16 * T + 2 * p
        r += ['v_mul_f32 v%d, s%d, v%d' % (a, sC, a), 'v_mul_f32 v%d, s%d, v%d' % (a + 1, sC, a + 1),
              'v_cvt_pk_bf16_f32 v%d, v%d, v%d' % (QB + 8 * T + p, a, a + 1)]
    return r

def gout(c):
    acc = (QACC, OACC)[c & 1]; r = []
    for T in range(4):
        if T % 2 == 0: r.append('s_mov_b32 s34, %d' % ((c * 4 + T) * 2048))
        for j in range(2):
            for p in range(4):
                a = acc + 16 * T + 8 * j + 2 * p
                r.append('v_cvt_pk_bf16_f32 v%d, v%d, v%d' % (QB + 8 * T + 4 * j + p, a, a + 1))
            r.append('buffer_store_dwordx4 %s, v%d, %s, s34 offen offset:%d' %
                     (vr('v', QB + 8 * T + 4 * j, 4), vST, vr('s', sX, 4), ((T & 1) * 2 + j) * 1024))
    return r

def spread(gaps, items, g0, g1):
    n = g1 - g0
    for k, it in enumerate(items):
        gaps[g0 + k * n // len(items)].append(it)

def emit_item(e, it):
    if isinstance(it, tuple):
        if it[0] == 'RARE':
            e('s_cbranch_vccnz L_rare%d' % it[1]); e.label('L_back%d' % it[1]); RARE.append(it[1])
        elif it[0] == 'DMA':
            e(it[1], tag=it[2])
        elif it[0] == 'WAITV':
            e.wait_v({it[1]})
        elif it[0] == 'NEXT':
            e('s_add_u32 s%d, s%d, 1' % (sA, sH))
            e('s_lshl_b32 s%d, s%d, 8' % (sNO, sA))
            e('s_cmp_lg_u32 s%d, 3' % sH)
            e('s_cbranch_scc1 L_notlast'); mark = len(e.out)
            e('s_mov_b32 s%d, s%d' % (sN, sWO)); e('s_mov_b32 s%d, s%d' % (sN + 1, sWO + 1))
            e('s_mov_b32 s%d, 0' % sNO); e('s_mov_b32 s%d, %d' % (sNH, 40960 - 1024)); e('s_mov_b32 s%d, %d' % (sNT, 81920))
            e('v_mov_b32 v%d, v%d' % (vON, vOWO)); e('v_mov_b32 v%d, v%d' % (vON + 1, vOWO + 1))
            for x in e.hist[-(len(e.out) - mark):]: x.ws = 0
            e.label('L_notlast')
        elif it[0] == 'STAMP':
            stamp(e, it[1])
    else:
        e(it, tag='st' if it.startswith('buffer_store') else None)

def stamp(e, idx):
    if not OPT['stamp']: return
    e('s_memtime s[%d:%d]' % (60 + 2 * idx, 61 + 2 * idx))

def emit_steps(e, positions, extra, last_pos=66):
    for si, pos in enumerate(positions):
        k, i = kind_of(pos)
        e.comment('---- step pos %d : %s%d' % (pos, k, i))
        ms = mfmas(pos)
        np_ = next_pos(pos)
        in_g = pos >= 27
        has_next = np_ <= last_pos
        nms = mfmas(np_ if (in_g or np_ < 27) else 0) if has_next else []
        gaps = [[] for _ in range(16)]
        if k == 'X' and 1 <= i <= 14:
            for p, (ex, rest) in enumerate(softmax_pairs(i)):
                gaps[2 * p] += ex; gaps[2 * p + 1] += rest
            gaps[15] += check(i)
        if k == 'X' and i == 15:
            for p, (ex, rest) in enumerate(softmax_pairs(15)):
                gaps[p] += ex + rest
            gaps[7] += check(15)
            gaps[9] += ['v_mov_b32 v%d, v%d' % (vT1, vL)]
            gaps[10] += ['v_permlane32_swap_b32 v%d, v%d' % (vL, vT1)]
            gaps[11] += ['v_add_f32 v%d, v%d, v%d' % (vL, vL, vT1)]
            gaps[12] += ['v_rcp_f32 v%d, v%d' % (vRL, vL)]
        if k == 'W' and i == 9:
            spread(gaps, qconv(0), 6, 10); spread(gaps, qconv(1), 10, 14); spread(gaps, qconv(2)[:12], 14, 16)
        if k == 'X' and i == 0:
            spread(gaps, qconv(2)[12:], 0, 2); spread(gaps, qconv(3), 2, 6)
            it = rowmax(SB[0], vT0) + ['v_sub_f32 v%d, 0, v%d' % (vT0, vT0)]
            it += ['v_add_f32 v%d, v%d, v%d' % (SB[0] + j, SB[0] + j, vT0) for j in range(16)]
            spread(gaps, it, 10, 15)
            it = []
            for ex, rest in softmax_pairs(0): it += ex + rest
            it += ['v_add_f32 v%d, v%d, v%d' % (vL, vTA, vTB)]
            it += ['v_mov_b32 v%d, v%d' % (NEGM + j, vT0) for j in range(16)]
            it += ['v_add_f32 v%d, v%d, v%d' % (SB[1] + j, SB[1] + j, vT0) for j in range(16)]
            gaps[15] += it
            gaps[6].append(('NEXT',))
        tiles = []
        if pos == PHANTOM + 1: tiles.append(PHANTOM + 8)
        if pos + 8 != PHANTOM and pos + 8 <= last_pos: tiles.append(pos + 8)
        sync = []
        if has_next:
            sync = [('WAITV', np_ % 27 if not in_g and np_ >= 27 else np_ if not in_g else np_ - 27), 's_barrier']
        gaps[8] = sync + gaps[8]
        d_items = []
        for tp in tiles:
            pre, four, post = dma_tile(tp, in_g)
            tag = tp - 27 if tp >= 27 else tp
            d_items.append((pre, [('DMA', f, tag) for f in four], post))
        slots = [9, 11, 13, 15] if len(tiles) == 1 else [9, 10, 11, 12, 13, 14, 15, 15]
        q = 0
        for pre, four, post in d_items:
            for n, f in enumerate(four):
                g = slots[q]; q += 1
                add = ([*pre] if n == 0 else []) + [f] + ([*post] if n == 3 else [])
                if g == 15 and k == 'X': gaps[g] = add + gaps[g] if not (len(tiles) == 2 and q == 8) else gaps[g][:1] + add + gaps[g][1:]
                else: gaps[g] += add
        for g in range(16):
            gaps[g] += extra.get(si * 16 + g, [])
        for g, m in enumerate(ms):
            if g % 2 == 0 or PF < 4: e.wait_l({g, g + 1} if PF >= 4 else {g})
            e('v_mfma_f32_32x32x16_bf16 %s, %s, %s, %s' % (m.d, vr('a', AF + 4 * (g % 8), 4), m.b, m.c))
            j = g + PF
            if j < 16: emit_reads(e, ms[j], j)
            elif has_next:
                assert g >= 9
                emit_reads(e, nms[j - 16], j)
            for it in gaps[g]: emit_item(e, it)

def srd(e, r, nbytes):
    e('s_mov_b32 s%d, %d' % (r + 2, nbytes)); e('s_mov_b32 s%d, 0x00020000' % (r + 3))

def gen_k1(e):
    e.label(K1)
    e('s_cmp_ge_u32 s2, 256'); e('s_cbranch_scc1 L_end')
    e('s_load_dwordx16 s[36:51], s[0:1], 0')
    e('s_load_dwordx4 s[52:55], s[0:1], 64')
    e('s_load_dwordx2 s[56:57], s[0:1], 96')
    if OPT['stamp']: stamp(e, 0)
    L = 32
    e('v_lshrrev_b32 v%d, 6, v0' % L)
    e('v_and_b32 v0, 63, v0')
    e('v_readfirstlane_b32 s35, v%d' % L)
    lane = 0
    r_, c_, hf, g1, s_, pos_, t0, t1, cs, ss = range(33, 43)
    e('v_bfe_u32 v%d, v0, 2, 2' % r_); e('v_and_b32 v%d, 3, v0' % c_); e('v_lshrrev_b32 v%d, 5, v0' % hf)
    e('v_bfe_u32 v%d, v0, 4, 1' % g1); e('v_lshrrev_b32 v%d, 4, v0' % s_); e('v_and_b32 v%d, 15, v0' % pos_)
    def swap2(dst, src):
        e('v_and_b32 v%d, 1, v%d' % (t0, src)); e('v_lshlrev_b32 v%d, 1, v%d' % (t0, t0))
        e('v_lshrrev_b32 v%d, 1, v%d' % (t1, src)); e('v_or_b32 v%d, v%d, v%d' % (dst, t0, t1))
    swap2(cs, c_); swap2(ss, s_)
    e('v_mul_u32_u24 v%d, %d, v%d' % (t0, PITCH, r_))
    e('v_lshl_add_u32 v%d, v%d, 8, v%d' % (t0, hf, t0))
    e('v_lshl_add_u32 v%d, v%d, 5, v%d' % (t0, g1, t0))
    e('v_lshl_add_u32 v%d, v%d, 3, v%d' % (vTV, c_, t0))
    e('v_lshl_add_u32 v%d, v%d, 3, v%d' % (vTS, cs, t0))
    e('v_and_b32 v%d, 7, v0' % t0); e('v_mul_u32_u24 v%d, %d, v%d' % (t0, PITCH, t0))
    e('v_bfe_u32 v%d, v0, 3, 2' % t1)
    e('v_lshl_add_u32 v%d, v%d, 8, v%d' % (t0, t1, t0))
    e('v_xor_b32 v%d, v%d, v%d' % (t1, t1, hf))
    e('v_lshl_add_u32 v%d, v%d, 4, v%d' % (vKE, t1, t0))
    e('v_xor_b32 v%d, 2, v%d' % (t1, t1))
    e('v_lshl_add_u32 v%d, v%d, 4, v%d' % (vKO, t1, t0))
    for b in (vTS, vTV, vKE, vKO):
        e('v_add_u32 v%d, %d, v%d' % (b + 1, 3 * SLOT, b)); e('v_add_u32 v%d, %d, v%d' % (b + 2, 6 * SLOT, b))
    e('s_lshr_b32 s58, s35, 1'); e('s_lshl_b32 s58, s58, 4'); e('s_and_b32 s59, s35, 1'); e('s_lshl_b32 s59, s59, 1')
    e('s_add_u32 s58, s58, s59')
    e('v_lshlrev_b32 v%d, 4, v%d' % (pos_, pos_)); e('v_add_u32 v%d, %d, v%d' % (t1, BIAS, pos_))
    e('v_lshl_add_u32 v%d, v%d, 2, s58' % (t0, s_))
    e('v_lshl_add_u32 v%d, v%d, 8, v%d' % (vOV, t0, t1)); e('v_add_u32 v%d, %d, v%d' % (vOV + 1, (256 - PITCH) & 0xffffffff, vOV))
    e('v_mul_u32_u24 v%d, 1280, v%d' % (vOWO, t0)); e('v_add_u32 v%d, v%d, v%d' % (vOWO, vOWO, t1))
    e('v_add_u32 v%d, %d, v%d' % (vOWO + 1, (1280 - PITCH) & 0xffffffff, vOWO))
    e('v_lshl_add_u32 v%d, v%d, 2, s58' % (t0, ss))
    e('v_lshl_add_u32 v%d, v%d, 13, v%d' % (vON, t0, t1)); e('v_add_u32 v%d, %d, v%d' % (vON + 1, 8192 - PITCH, vON))
    e('s_lshl_b32 s59, s35, 1')
    e('v_lshl_add_u32 v%d, v%d, 3, s59' % (t0, s_))
    e('v_lshlrev_b32 v%d, 4, v%d' % (t1, s_)); e('v_xor_b32 v%d, v%d, v%d' % (t1, t1, pos_)); e('v_add_u32 v%d, %d, v%d' % (t1, BIAS, t1))
    e('v_lshl_add_u32 v%d, v%d, 8, v%d' % (vOK, t0, t1)); e('v_add_u32 v%d, %d, v%d' % (vOK + 1, (256 - PITCH) & 0xffffffff, vOK))
    e('s_mul_i32 s59, s35, 40960')
    e('v_lshl_add_u32 v%d, v0, 4, s59' % vST)
    e('v_and_b32 v%d, 31, v0' % t0); e('v_mul_u32_u24 v%d, 1280, v%d' % (t0, t0))
    e('v_lshl_add_u32 v%d, v%d, 4, v%d' % (t0, hf, t0)); e('v_add_u32 v%d, s59, v%d' % (t0, t0))
    e('s_mul_i32 s%d, s35, %d' % (sWV, 2 * PITCH))
    e('s_and_b32 s58, s2, 3'); e('s_lshl_b32 s58, s58, 1'); e('s_bfe_u32 s59, s2, 0x10003'); e('s_add_u32 s58, s58, s59')
    e('s_lshr_b32 s59, s2, 4')
    e('s_bfe_u32 s3, s2, 0x10002')
    e('s_waitcnt lgkmcnt(0)')
    e('s_cmp_eq_u32 s3, 0')
    e('s_cselect_b64 s[%d:%d], s[36:37], s[46:47]' % (sX, sX + 1))
    e('s_cselect_b64 s[%d:%d], s[38:39], s[48:49]' % (sK, sK + 1))
    e('s_cselect_b64 s[%d:%d], s[40:41], s[50:51]' % (sV, sV + 1))
    e('s_cselect_b64 s[%d:%d], s[42:43], s[52:53]' % (sN, sN + 1))
    e('s_cselect_b64 s[%d:%d], s[44:45], s[54:55]' % (sWO, sWO + 1))
    def addp(r, sreg):
        e('s_add_u32 s%d, s%d, s%d' % (r, r, sreg)); e('s_addc_u32 s%d, s%d, 0' % (r + 1, r + 1))
    def subb(r):
        e('s_sub_u32 s%d, s%d, %d' % (r, r, BIAS)); e('s_subb_u32 s%d, s%d, 0' % (r + 1, r + 1))
    e('s_mul_i32 s34, s59, 163840'); addp(sX, 34); srd(e, sX, 163840)
    for kk in range(40):
        e('buffer_load_dwordx4 %s, v%d, %s, 0 offen offset:%d' % (vr('a', 4 * kk, 4), t0, vr('s', sX, 4), kk * 32), tag='x%d' % kk)
    e('s_lshl_b32 s34, s58, 10'); addp(sN, 34); subb(sN); srd(e, sN, 640 * 8192 + BIAS)
    e('s_mov_b32 s%d, 0' % sNO); e('s_mov_b32 s%d, %d' % (sNH, 32 * 8192 - 1024)); e('s_mov_b32 s%d, %d' % (sNT, 64 * 8192))
    for tp in range(8):
        pre, four, post = dma_tile(tp, False)
        if tp == 5: e.wait_v({'x11'})
        for s in pre: e(s)
        for s in four: e(s, tag=tp)
        for s in post: e(s)
        if tp == 1:
            e('s_lshl_b32 s34, s59, 22'); e('s_lshl_b32 s35, s58, 19'); e('s_add_u32 s34, s34, s35')
            addp(sK, 34); subb(sK); srd(e, sK, 4 * 131072 + BIAS)
            addp(sV, 34); subb(sV); srd(e, sV, 4 * 131072 + BIAS)
            e('s_mul_i32 s34, s58, %d' % (512 * 1280)); addp(sWO, 34); subb(sWO)
            e('s_mov_b32 s%d, 0' % sKVH); e('s_mov_b32 s%d, 0' % sH)
            e('s_mov_b32 s%d, 0x%x' % (sTHR, fbits(65536.0)))
            e('s_mov_b32 s%d, 0x%x' % (sC, fbits(math.log2(math.e) / math.sqrt(128.0))))
            e('s_lshl_b32 s34, s3, 4'); e('s_add_u32 s34, s34, s59'); e('s_lshl_b32 s34, s34, 3'); e('s_add_u32 s34, s34, s58')
            e('s_mul_i32 s34, s34, 163840'); addp(56, 34)
    e.wait_v({0})
    e('s_mov_b32 s%d, s56' % sX); e('s_mov_b32 s%d, s57' % (sX + 1))
    e('s_barrier')
    m0 = mfmas(0)
    for j in range(PF): emit_reads(e, m0[j], j)
    stamp(e, 1)
    st0 = e.state()
    emit_steps(e, list(range(NV)), {})
    e.label('L_common')
    stc = e.state()
    emit_steps(e, [p for p in range(NV, 27) if p != PHANTOM], {})
    e('s_add_u32 s%d, s%d, 131072' % (sKVH, sKVH))
    e('s_add_u32 s%d, s%d, 1' % (sH, sH))
    if OPT['stamp']:
        for h in range(1, 5):
            e('s_cmp_lg_u32 s%d, %d' % (sH, h)); e('s_cbranch_scc1 L_st%d' % h); stamp(e, 1 + h); e.label('L_st%d' % h)
    e('s_cmp_eq_u32 s%d, 1' % sH); e('s_cbranch_scc1 L_v1')
    e('s_cmp_eq_u32 s%d, 2' % sH); e('s_cbranch_scc1 L_v2')
    e('s_cmp_eq_u32 s%d, 3' % sH); e('s_cbranch_scc1 L_v3')
    ste = e.state()
    assert ste[1] == st0[1] and ste[2] == st0[2], (ste[1:], st0[1:])
    extra = {}
    def put(items, g0, g1):
        for k, it in enumerate(items):
            extra.setdefault(g0 + k * (g1 - g0) // len(items), []).append(it)
    put(epilogue(3), 1, 16 * NV)
    for c in range(4): put(gout(c), (c + 1) * 128 + 3, (c + 1) * 128 + 3 + 32)
    emit_steps(e, list(range(27, 67)), extra)
    for it in gout(4): emit_item(e, it)
    if OPT['stamp']:
        stamp(e, 6)
        e('s_waitcnt vmcnt(0)'); stamp(e, 7)
        e('s_waitcnt lgkmcnt(0)')
        e('s_cmp_lg_u32 s%d, 0' % sWV); e('s_cbranch_scc1 L_end')
        e('s_load_dwordx2 s[56:57], s[0:1], 96'); e('s_waitcnt lgkmcnt(0)')
        e('s_lshl_b32 s34, s2, 6'); e('s_add_u32 s34, s34, 0x4000000'); addp(56, 34); srd(e, 56, 64)
        for i in range(8):
            e('v_mov_b32 v%d, s%d' % (32 + i, 60 + 2 * i))
        e('v_mov_b32 v40, 0')
        e('buffer_store_dwordx4 v[32:35], v40, s[56:59], 0 offen'); e('buffer_store_dwordx4 v[36:39], v40, s[56:59], 0 offen offset:16')
    e.label('L_end')
    e('s_endpgm')
    for h in (1, 2, 3):
        e.label('L_v%d' % h)
        e.set_state(ste)
        extra = {}
        put(epilogue(h - 1), 1, 16 * NV)
        emit_steps(e, list(range(NV)), extra)
        e('s_branch L_common')
        s = e.state(); assert s[1] == stc[1] and s[2] == stc[2]
    for t in sorted(set(RARE)): emit_rare(e, t)

def gen_k2(e):
    e.label(K2)
    e.hist = []; e.lq = []; e.vq = []
    e('s_cmp_ge_u32 s2, 1280'); e('s_cbranch_scc1 L_end2')
    e('s_load_dwordx2 s[4:5], s[0:1], 96'); e('s_load_dwordx2 s[8:9], s[0:1], 80')
    e('s_mul_hi_u32 s12, s2, 0xcccccccd'); e('s_lshr_b32 s12, s12, 3')
    e('s_mul_i32 s13, s12, 10'); e('s_sub_u32 s13, s2, s13')
    e('s_and_b32 s14, s12, 3'); e('s_lshr_b32 s15, s12, 2')
    e('v_and_b32 v1, 7, v0'); e('v_bfe_u32 v2, v0, 3, 3'); e('v_lshrrev_b32 v3, 6, v0')
    e('v_lshl_add_u32 v1, v3, 3, v1')
    e('v_lshlrev_b32 v4, 4, v1'); e('v_lshl_add_u32 v4, v2, 9, v4')
    e('v_mul_u32_u24 v5, 2560, v1'); e('v_lshl_add_u32 v5, v2, 4, v5')
    e('s_mul_i32 s16, s14, 40960'); e('s_lshl_b32 s17, s13, 12'); e('s_add_u32 s16, s16, s17')
    e('s_mul_i32 s17, s15, %d' % (8 * 163840)); e('s_add_u32 s16, s16, s17')
    e('s_and_b32 s18, s15, 15'); e('s_lshl_b32 s18, s18, 2'); e('s_add_u32 s18, s18, s14'); e('s_mul_i32 s18, s18, %d' % (32 * 2560))
    e('s_lshr_b32 s19, s15, 4'); e('s_mul_i32 s19, s19, 1280'); e('s_add_u32 s18, s18, s19')
    e('s_lshl_b32 s19, s13, 7'); e('s_add_u32 s18, s18, s19')
    e('s_waitcnt lgkmcnt(0)')
    e('s_add_u32 s4, s4, s16'); e('s_addc_u32 s5, s5, 0'); srd(e, 4, 8 * 163840)
    srd(e, 8, 16 * 128 * 2560)
    for p in range(8):
        e('s_mov_b32 s20, %d' % (p * 163840))
        e('buffer_load_dwordx4 %s, v4, s[4:7], s20 offen' % vr('v', 8 + 4 * p, 4), tag=p)
    e('v_add_u32 v5, s18, v5')
    e('s_mov_b32 s21, 0xffff0000')
    for p in range(8):
        e.wait_v({p})
        for i in range(4):
            src = 8 + 4 * p + i
            if p == 0:
                e('v_lshlrev_b32 v%d, 16, v%d' % (40 + 2 * i, src)); e('v_and_b32 v%d, s21, v%d' % (41 + 2 * i, src))
            else:
                e('v_lshlrev_b32 v6, 16, v%d' % src); e('v_and_b32 v7, s21, v%d' % src)
                e('v_add_f32 v%d, v%d, v6' % (40 + 2 * i, 40 + 2 * i)); e('v_add_f32 v%d, v%d, v7' % (41 + 2 * i, 41 + 2 * i))
    for i in range(4): e('v_cvt_pk_bf16_f32 v%d, v%d, v%d' % (8 + i, 40 + 2 * i, 41 + 2 * i))
    e('buffer_store_dwordx4 v[8:11], v5, s[8:11], 0 offen')
    e.label('L_end2')
    e('s_endpgm')

def kd(name, nv, acc, ns=102):
    return '''.amdhsa_kernel %s
  .amdhsa_next_free_vgpr %d
  .amdhsa_next_free_sgpr %d
  .amdhsa_accum_offset %d
  .amdhsa_group_segment_fixed_size 0
  .amdhsa_kernarg_size 104
  .amdhsa_user_sgpr_count 2
  .amdhsa_user_sgpr_kernarg_segment_ptr 1
  .amdhsa_system_sgpr_workgroup_id_x 1
.end_amdhsa_kernel
''' % (name, nv, ns, acc)

def main():
    ref = open('cdna_kernels/%s.s.ref' % NAME).read().split('\n')
    head = [l for l in ref if l.startswith(';') and '@launch' not in l]
    e = Em()
    for l in head: e.raw(l)
    e.raw('; @launch kernel=%s grid=(256,1,1) block=(256,1,1) lds=%d' % (K1, LDS_BYTES))
    e.raw('; @launch kernel=%s grid=(1280,1,1) block=(256,1,1) lds=0' % K2)
    e.raw('.amdgcn_target "amdgcn-amd-amdhsa--gfx950"'); e.raw('.text')
    for n, g in ((K1, gen_k1), (K2, gen_k2)):
        e.raw('.globl %s' % n); e.raw('.p2align 8'); e.raw('.type %s,@function' % n)
        g(e)
    e.raw('.section .rodata,"a"'); e.raw('.p2align 6'); e.raw(kd(K1, 512, 256)); e.raw('.p2align 6'); e.raw(kd(K2, 48, 48, 32))
    open(sys.argv[1], 'w').write(e.text())
    print('pads', e.npad, 'lines', len(e.out))
main()
```

```python
import sys, struct, math
sys.path.insert(0, 'gen')
from asmlib import Em

NAME = 'concat_heads__mha_block_cached__mha_block_cached__near_ridge'
K1 = NAME + '_kernel'
K2 = 'reduce_partials_kernel'

OPT = dict(stamp=0, nt=0, pf=6, nv=3, nodma=0, nobar=0, nost=0, stmod=0)
for a in sys.argv[2:]:
    k, v = a.split('='); OPT[k] = int(v)

PITCH = 2112; SLOT = 8 * PITCH; NSLOT = 9; BIAS = 4096
LDS_BYTES = NSLOT * SLOT
PF = OPT['pf']; NV = OPT['nv']
def fbits(x): return struct.unpack('<I', struct.pack('<f', x))[0]

vTS, vTV, vKE, vKO = 1, 4, 7, 10
vON, vOV, vOK, vOWO = 13, 15, 17, 19
vST, vL, vRL = 21, 22, 23
vE = [24, 25, 26, 27]; vTA, vTB, vT0, vT1 = 28, 29, 30, 31
QB = 32; OACC = 64; SB = [128, 144]; NEGM = 160; PB = [176, 184]; QACC = 128
OB = [('a', 160), ('a', 192), ('v', 192), ('v', 224)]
AF = 224
sK, sV, sN, sWO, sX = 4, 8, 12, 16, 20
sWV, sKVH, sNO, sNH, sNT, sA, sB, sH, sTHR, sC = 24, 25, 26, 27, 28, 29, 30, 31, 32, 33

def vr(k, lo, n): return '%s[%d:%d]' % (k, lo, lo + n - 1)

PHANTOM = 11
def kind_of(pos):
    if pos >= 27: return ('G', pos - 27)
    if pos <= 9: return ('W', pos)
    if pos == 10: return ('X', 0)
    if pos == PHANTOM: return None
    return ('X', pos - 11)

class MF:
    def __init__(self, d, b, c, reads):
        self.d, self.b, self.c, self.reads = d, b, c, reads

def t_reads(base, slot, half, kb, T):
    off = (slot % 3) * SLOT + half * 1024 + kb * 4 * PITCH + T * 64
    a = 'v%d' % (base + slot // 3)
    return [('ds_read_b64_tr_b16', 0, 2, a, off), ('ds_read_b64_tr_b16', 2, 2, a, off + 512)]
def k_reads(slot, half, kk):
    off = (slot % 3) * SLOT + half * 1024 + (kk >> 1) * 64
    a = 'v%d' % ((vKO if kk & 1 else vKE) + slot // 3)
    return [('ds_read_b128', 0, 4, a, off)]

def qk(slot, half, t, c0):
    d = vr('v', SB[t & 1], 16)
    return [MF(d, vr('v', QB + 4 * kk, 4), (c0 if kk == 0 else d), k_reads(slot, half, kk)) for kk in range(8)]
def pv(slot, half, t):
    r = []
    for kb in range(2):
        for T in range(4):
            d = vr('v', OACC + 16 * T, 16)
            r.append(MF(d, vr('v', PB[t & 1] + 4 * kb, 4), ('0' if (t == 0 and kb == 0) else d),
                        t_reads(vTV, slot, half, kb, T)))
    return r

def mfmas(pos):
    k, i = kind_of(pos); slot = pos % NSLOT
    if k == 'W':
        order = [(kx, T) for kx in range(4) for T in range(4)]
        if i == 9: order = [(kx, T) for T in range(4) for kx in range(4)]
        r = []
        for kx, T in order:
            d = vr('v', QACC + 16 * T, 16)
            r.append(MF(d, vr('a', (4 * i + kx) * 4, 4), ('0' if (i == 0 and kx == 0) else d),
                        t_reads(vTS, slot, kx >> 1, kx & 1, T)))
        return r
    if k == 'G':
        c, ti = divmod(i, 8); acc = (QACC, OACC)[c & 1]
        ok, ob = OB[ti >> 1]
        r = []
        for kx in range(4):
            for T in range(4):
                d = vr('v', acc + 16 * T, 16)
                r.append(MF(d, vr(ok, ob + ((ti & 1) * 4 + kx) * 4, 4), ('0' if (ti == 0 and kx == 0) else d),
                            t_reads(vTS, slot, kx >> 1, kx & 1, T)))
        return r
    if i == 0: return qk(slot, 0, 0, '0') + qk(slot, 1, 1, '0')
    if i == 15: return pv(slot, 0, 14) + pv(slot, 1, 15)
    return qk(slot, 1, i + 1, vr('v', NEGM, 16)) + pv(slot, 0, i - 1)

def next_pos(pos):
    return pos + 2 if pos + 1 == PHANTOM else pos + 1

NT = ' nt' if OPT['nt'] else ''
def dma_tile(pos, in_g):
    slot = pos % NSLOT
    ins = ['s_add_u32 m0, s%d, %d' % (sWV, slot * SLOT)]
    def four(srd0, v0, so0, srd1, v1, so1, mod=''):
        return ['buffer_load_dwordx4 v%d, %s, s%d offen%s lds' % (v0, vr('s', srd0, 4), so0, mod),
                'buffer_load_dwordx4 v%d, %s, s%d offen offset:1024%s lds' % (v1, vr('s', srd1, 4), so1, mod),
                'buffer_load_dwordx4 v%d, %s, s%d offen offset:%d%s lds' % (v0 + 1, vr('s', srd0, 4), so0, PITCH, mod),
                'buffer_load_dwordx4 v%d, %s, s%d offen offset:%d%s lds' % (v1 + 1, vr('s', srd1, 4), so1, PITCH + 1024, mod)]
    if in_g:
        c, ti = divmod(pos - 27, 8)
        o = ti * 81920 + c * 256
        ins += ['s_mov_b32 s%d, %d' % (sA, o), 's_mov_b32 s%d, %d' % (sB, o + 40960 - 1024)]
        return ins, four(sN, vON, sA, sN, vON, sB), []
    if pos >= 27 or pos <= 9:
        ins += ['s_add_u32 s%d, s%d, s%d' % (sB, sNO, sNH)]
        return ins, four(sN, vON, sNO, sN, vON, sB), ['s_add_u32 s%d, s%d, s%d' % (sNO, sNO, sNT)]
    _, t = kind_of(pos)
    h0 = (sK, vOK, 0) if t == 0 else (sV, vOV, t - 1)
    h1 = (sV, vOV, 15) if t == 15 else (sK, vOK, t + 1)
    ins += ['s_add_u32 s%d, s%d, %d' % (sA, sKVH, h0[2] * 8192), 's_add_u32 s%d, s%d, %d' % (sB, sKVH, h1[2] * 8192 - 1024)]
    return ins, four(h0[0], h0[1], sA, h1[0], h1[1], sB, NT), []

def emit_reads(e, m, gi):
    f = AF + 4 * (gi % 8)
    for op, o, n, a, off in m.reads:
        e('%s %s, %s offset:%d' % (op, vr('a', f + o, n), a, off), tag=gi % 16)

def softmax_pairs(t):
    S = SB[t & 1]; P = PB[t & 1]; g = []
    for p in range(8):
        ea, eb = vE[(p & 1) * 2], vE[(p & 1) * 2 + 1]
        ex = ['v_exp_f32 v%d, v%d' % (ea, S + 2 * p), 'v_exp_f32 v%d, v%d' % (eb, S + 2 * p + 1)]
        if p == 0:
            rest = ['v_cvt_pk_bf16_f32 v%d, v%d, v%d' % (P + p, ea, eb), 'v_add_f32 v%d, v%d, v%d' % (vTA, ea, eb)]
        elif p == 1:
            rest = ['v_cvt_pk_bf16_f32 v%d, v%d, v%d' % (P + p, ea, eb), 'v_add_f32 v%d, v%d, v%d' % (vTB, ea, eb)]
        else:
            rest = ['v_add_f32 v%d, v%d, v%d' % (vTA, vTA, ea), 'v_cvt_pk_bf16_f32 v%d, v%d, v%d' % (P + p, ea, eb),
                    'v_add_f32 v%d, v%d, v%d' % (vTB, vTB, eb)]
        g.append((ex, rest))
    return g

def rowmax(S, dst):
    r = ['v_max3_f32 v%d, v%d, v%d, v%d' % (dst, S, S + 1, S + 2), 'v_max3_f32 v%d, v%d, v%d, v%d' % (vT1, S + 3, S + 4, S + 5)]
    for i in range(6, 16, 4):
        r.append('v_max3_f32 v%d, v%d, v%d, v%d' % (dst, dst, S + i, S + i + 1))
        if i + 2 < 16: r.append('v_max3_f32 v%d, v%d, v%d, v%d' % (vT1, vT1, S + i + 2, S + i + 3))
    r += ['v_max_f32 v%d, v%d, v%d' % (dst, dst, vT1), 'v_mov_b32 v%d, v%d' % (vT1, dst),
          'v_permlane32_swap_b32 v%d, v%d' % (dst, vT1), 'v_max_f32 v%d, v%d, v%d' % (dst, dst, vT1)]
    return r

RARE = []
def check(t):
    return ['v_add_f32 v%d, v%d, v%d' % (vTA, vTA, vTB), 'v_cmp_nge_f32 vcc, s%d, v%d' % (sTHR, vTA),
            ('RARE', t), 'v_add_f32 v%d, v%d, v%d' % (vL, vL, vTA)]

def emit_rare(e, t):
    S = SB[t & 1]; S2 = SB[(t + 1) & 1]
    e.label('L_rare%d' % t)
    e.hist = []
    e('s_nop 15')
    for s in rowmax(S, vT0): e(s)
    e('v_max_f32 v%d, 0, v%d' % (vT0, vT0))
    e('v_sub_f32 v%d, 0, v%d' % (vT1, vT0))
    e('v_exp_f32 v%d, v%d' % (vT1, vT1))
    for i in range(16): e('v_sub_f32 v%d, v%d, v%d' % (S + i, S + i, vT0))
    if t < 15:
        for i in range(16): e('v_sub_f32 v%d, v%d, v%d' % (S2 + i, S2 + i, vT0))
        for i in range(16): e('v_sub_f32 v%d, v%d, v%d' % (NEGM + i, NEGM + i, vT0))
    for i in range(64): e('v_mul_f32 v%d, v%d, v%d' % (OACC + i, OACC + i, vT1))
    e('v_mul_f32 v%d, v%d, v%d' % (vL, vL, vT1))
    for ex, rest in softmax_pairs(t):
        for s in ex + rest: e(s)
    e('v_add_f32 v%d, v%d, v%d' % (vTA, vTA, vTB))
    e('s_nop 3')
    e('s_branch L_back%d' % t)

def epilogue(h):
    ok, ob = OB[h]; r = []
    for T in range(4):
        for p in range(8):
            a = OACC + 16 * T + 2 * p
            r += ['v_mul_f32 v%d, v%d, v%d' % (a, a, vRL), 'v_mul_f32 v%d, v%d, v%d' % (a + 1, a + 1, vRL)]
            if ok == 'v':
                r.append('v_cvt_pk_bf16_f32 v%d, v%d, v%d' % (ob + 8 * T + p, a, a + 1))
            else:
                r += ['v_cvt_pk_bf16_f32 v%d, v%d, v%d' % (a, a, a + 1), 'v_accvgpr_write_b32 a%d, v%d' % (ob + 8 * T + p, a)]
    return r

def qconv(T):
    r = []
    for p in range(8):
        a = QACC + 16 * T + 2 * p
        r += ['v_mul_f32 v%d, s%d, v%d' % (a, sC, a), 'v_mul_f32 v%d, s%d, v%d' % (a + 1, sC, a + 1),
              'v_cvt_pk_bf16_f32 v%d, v%d, v%d' % (QB + 8 * T + p, a, a + 1)]
    return r

def gout(c):
    acc = (QACC, OACC)[c & 1]; r = []
    for T in range(4):
        if T % 2 == 0: r.append('s_mov_b32 s34, %d' % ((c * 4 + T) * 2048))
        for j in range(2):
            for p in range(4):
                a = acc + 16 * T + 8 * j + 2 * p
                r.append('v_cvt_pk_bf16_f32 v%d, v%d, v%d' % (QB + 8 * T + 4 * j + p, a, a + 1))
            r.append('buffer_store_dwordx4 %s, v%d, %s, s34 offen offset:%d%s' %
                     (vr('v', QB + 8 * T + 4 * j, 4), vST, vr('s', sX, 4), ((T & 1) * 2 + j) * 1024, ['', ' nt', ' sc1', ' sc0 sc1', ' sc0 sc1 nt'][OPT['stmod']]))
    return r

def spread(gaps, items, g0, g1):
    n = g1 - g0
    for k, it in enumerate(items):
        gaps[g0 + k * n // len(items)].append(it)

def emit_item(e, it):
    if isinstance(it, tuple):
        if it[0] == 'RARE':
            e('s_cbranch_vccnz L_rare%d' % it[1]); e.label('L_back%d' % it[1]); RARE.append(it[1])
        elif it[0] == 'DMA':
            if OPT['nodma']: e.vq.append(it[2])
            else: e(it[1], tag=it[2])
        elif it[0] == 'STAMPH':
            if OPT['stamp']:
                for h in range(4):
                    e('s_cmp_lg_u32 s%d, %d' % (sH, h)); e('s_cbranch_scc1 L_sh%d_%d' % (it[1], h)); stamp(e, it[1] + 2 * h); e.label('L_sh%d_%d' % (it[1], h))
        elif it[0] == 'WAITV':
            e.wait_v({it[1]})
        elif it[0] == 'NEXT':
            e('s_add_u32 s%d, s%d, 1' % (sA, sH))
            e('s_lshl_b32 s%d, s%d, 8' % (sNO, sA))
            e('s_cmp_lg_u32 s%d, 3' % sH)
            e('s_cbranch_scc1 L_notlast'); mark = len(e.out)
            e('s_mov_b32 s%d, s%d' % (sN, sWO)); e('s_mov_b32 s%d, s%d' % (sN + 1, sWO + 1))
            e('s_mov_b32 s%d, 0' % sNO); e('s_mov_b32 s%d, %d' % (sNH, 40960 - 1024)); e('s_mov_b32 s%d, %d' % (sNT, 81920))
            e('v_mov_b32 v%d, v%d' % (vON, vOWO)); e('v_mov_b32 v%d, v%d' % (vON + 1, vOWO + 1))
            for x in e.hist[-(len(e.out) - mark):]: x.ws = 0
            e.label('L_notlast')
        elif it[0] == 'STAMP':
            stamp(e, it[1])
    elif it == 's_barrier' and OPT['nobar']: pass
    elif it.startswith('buffer_store') and OPT['nost']: pass
    else:
        e(it, tag='st' if it.startswith('buffer_store') else None)

def stamp(e, idx):
    if not OPT['stamp']: return
    e('s_memtime s[%d:%d]' % (60 + 2 * idx, 61 + 2 * idx))

def emit_steps(e, positions, extra, last_pos=66):
    for si, pos in enumerate(positions):
        k, i = kind_of(pos)
        e.comment('---- step pos %d : %s%d' % (pos, k, i))
        ms = mfmas(pos)
        np_ = next_pos(pos)
        in_g = pos >= 27
        has_next = np_ <= last_pos
        nms = mfmas(np_ if (in_g or np_ < 27) else 0) if has_next else []
        gaps = [[] for _ in range(16)]
        if k == 'X' and 1 <= i <= 14:
            for p, (ex, rest) in enumerate(softmax_pairs(i)):
                gaps[2 * p] += ex; gaps[2 * p + 1] += rest
            gaps[15] += check(i)
        if k == 'X' and i == 15:
            for p, (ex, rest) in enumerate(softmax_pairs(15)):
                gaps[p] += ex + rest
            gaps[7] += check(15)
            gaps[9] += ['v_mov_b32 v%d, v%d' % (vT1, vL)]
            gaps[10] += ['v_permlane32_swap_b32 v%d, v%d' % (vL, vT1)]
            gaps[11] += ['v_add_f32 v%d, v%d, v%d' % (vL, vL, vT1)]
            gaps[12] += ['v_rcp_f32 v%d, v%d' % (vRL, vL)]
        if k == 'W' and i == 9:
            gaps[15].append(('STAMPH', 2))
            spread(gaps, qconv(0), 6, 10); spread(gaps, qconv(1), 10, 14); spread(gaps, qconv(2)[:12], 14, 16)
        if k == 'X' and i == 0:
            spread(gaps, qconv(2)[12:], 0, 2); spread(gaps, qconv(3), 2, 6)
            it = rowmax(SB[0], vT0) + ['v_sub_f32 v%d, 0, v%d' % (vT0, vT0)]
            it += ['v_add_f32 v%d, v%d, v%d' % (SB[0] + j, SB[0] + j, vT0) for j in range(16)]
            spread(gaps, it, 10, 15)
            it = []
            for ex, rest in softmax_pairs(0): it += ex + rest
            it += ['v_add_f32 v%d, v%d, v%d' % (vL, vTA, vTB)]
            it += ['v_mov_b32 v%d, v%d' % (NEGM + j, vT0) for j in range(16)]
            it += ['v_add_f32 v%d, v%d, v%d' % (SB[1] + j, SB[1] + j, vT0) for j in range(16)]
            gaps[15] += it
            gaps[6].append(('NEXT',))
        tiles = []
        if pos == PHANTOM + 1: tiles.append(PHANTOM + 8)
        if pos + 8 != PHANTOM and pos + 8 <= last_pos: tiles.append(pos + 8)
        sync = []
        if has_next:
            sync = [('WAITV', np_ % 27 if not in_g and np_ >= 27 else np_ if not in_g else np_ - 27), 's_barrier']
        gaps[8] = sync + gaps[8]
        d_items = []
        for tp in tiles:
            pre, four, post = dma_tile(tp, in_g)
            tag = tp - 27 if tp >= 27 else tp
            d_items.append((pre, [('DMA', f, tag) for f in four], post))
        slots = [9, 11, 13, 15] if len(tiles) == 1 else [9, 10, 11, 12, 13, 14, 15, 15]
        q = 0
        for pre, four, post in d_items:
            for n, f in enumerate(four):
                g = slots[q]; q += 1
                add = ([*pre] if n == 0 else []) + [f] + ([*post] if n == 3 else [])
                if g == 15 and k == 'X': gaps[g] = add + gaps[g] if not (len(tiles) == 2 and q == 8) else gaps[g][:1] + add + gaps[g][1:]
                else: gaps[g] += add
        for g in range(16):
            gaps[g] += extra.get(si * 16 + g, [])
        for g, m in enumerate(ms):
            if g % 2 == 0 or PF < 4: e.wait_l({g, g + 1} if PF >= 4 else {g})
            e('v_mfma_f32_32x32x16_bf16 %s, %s, %s, %s' % (m.d, vr('a', AF + 4 * (g % 8), 4), m.b, m.c))
            j = g + PF
            if j < 16: emit_reads(e, ms[j], j)
            elif has_next:
                assert g >= 9
                emit_reads(e, nms[j - 16], j)
            for it in gaps[g]: emit_item(e, it)

def srd(e, r, nbytes):
    e('s_mov_b32 s%d, %d' % (r + 2, nbytes)); e('s_mov_b32 s%d, 0x00020000' % (r + 3))

def gen_k1(e):
    e.label(K1)
    e('s_cmp_ge_u32 s2, 256'); e('s_cbranch_scc1 L_end')
    e('s_load_dwordx16 s[36:51], s[0:1], 0')
    e('s_load_dwordx4 s[52:55], s[0:1], 64')
    e('s_load_dwordx2 s[56:57], s[0:1], 96')
    if OPT['stamp']: stamp(e, 0)
    L = 32
    e('v_lshrrev_b32 v%d, 6, v0' % L)
    e('v_and_b32 v0, 63, v0')
    e('v_readfirstlane_b32 s35, v%d' % L)
    lane = 0
    r_, c_, hf, g1, s_, pos_, t0, t1, cs, ss = range(33, 43)
    e('v_bfe_u32 v%d, v0, 2, 2' % r_); e('v_and_b32 v%d, 3, v0' % c_); e('v_lshrrev_b32 v%d, 5, v0' % hf)
    e('v_bfe_u32 v%d, v0, 4, 1' % g1); e('v_lshrrev_b32 v%d, 4, v0' % s_); e('v_and_b32 v%d, 15, v0' % pos_)
    def swap2(dst, src):
        e('v_and_b32 v%d, 1, v%d' % (t0, src)); e('v_lshlrev_b32 v%d, 1, v%d' % (t0, t0))
        e('v_lshrrev_b32 v%d, 1, v%d' % (t1, src)); e('v_or_b32 v%d, v%d, v%d' % (dst, t0, t1))
    swap2(cs, c_); swap2(ss, s_)
    e('v_mul_u32_u24 v%d, %d, v%d' % (t0, PITCH, r_))
    e('v_lshl_add_u32 v%d, v%d, 8, v%d' % (t0, hf, t0))
    e('v_lshl_add_u32 v%d, v%d, 5, v%d' % (t0, g1, t0))
    e('v_lshl_add_u32 v%d, v%d, 3, v%d' % (vTV, c_, t0))
    e('v_lshl_add_u32 v%d, v%d, 3, v%d' % (vTS, cs, t0))
    e('v_and_b32 v%d, 7, v0' % t0); e('v_mul_u32_u24 v%d, %d, v%d' % (t0, PITCH, t0))
    e('v_bfe_u32 v%d, v0, 3, 2' % t1)
    e('v_lshl_add_u32 v%d, v%d, 8, v%d' % (t0, t1, t0))
    e('v_xor_b32 v%d, v%d, v%d' % (t1, t1, hf))
    e('v_lshl_add_u32 v%d, v%d, 4, v%d' % (vKE, t1, t0))
    e('v_xor_b32 v%d, 2, v%d' % (t1, t1))
    e('v_lshl_add_u32 v%d, v%d, 4, v%d' % (vKO, t1, t0))
    for b in (vTS, vTV, vKE, vKO):
        e('v_add_u32 v%d, %d, v%d' % (b + 1, 3 * SLOT, b)); e('v_add_u32 v%d, %d, v%d' % (b + 2, 6 * SLOT, b))
    e('s_lshr_b32 s58, s35, 1'); e('s_lshl_b32 s58, s58, 4'); e('s_and_b32 s59, s35, 1'); e('s_lshl_b32 s59, s59, 1')
    e('s_add_u32 s58, s58, s59')
    e('v_lshlrev_b32 v%d, 4, v%d' % (pos_, pos_)); e('v_add_u32 v%d, %d, v%d' % (t1, BIAS, pos_))
    e('v_lshl_add_u32 v%d, v%d, 2, s58' % (t0, s_))
    e('v_lshl_add_u32 v%d, v%d, 8, v%d' % (vOV, t0, t1)); e('v_add_u32 v%d, %d, v%d' % (vOV + 1, (256 - PITCH) & 0xffffffff, vOV))
    e('v_mul_u32_u24 v%d, 1280, v%d' % (vOWO, t0)); e('v_add_u32 v%d, v%d, v%d' % (vOWO, vOWO, t1))
    e('v_add_u32 v%d, %d, v%d' % (vOWO + 1, (1280 - PITCH) & 0xffffffff, vOWO))
    e('v_lshl_add_u32 v%d, v%d, 2, s58' % (t0, ss))
    e('v_lshl_add_u32 v%d, v%d, 13, v%d' % (vON, t0, t1)); e('v_add_u32 v%d, %d, v%d' % (vON + 1, 8192 - PITCH, vON))
    e('s_lshl_b32 s59, s35, 1')
    e('v_lshl_add_u32 v%d, v%d, 3, s59' % (t0, s_))
    e('v_lshlrev_b32 v%d, 4, v%d' % (t1, s_)); e('v_xor_b32 v%d, v%d, v%d' % (t1, t1, pos_)); e('v_add_u32 v%d, %d, v%d' % (t1, BIAS, t1))
    e('v_lshl_add_u32 v%d, v%d, 8, v%d' % (vOK, t0, t1)); e('v_add_u32 v%d, %d, v%d' % (vOK + 1, (256 - PITCH) & 0xffffffff, vOK))
    e('s_mul_i32 s59, s35, 40960')
    e('v_lshl_add_u32 v%d, v0, 4, s59' % vST)
    e('v_and_b32 v%d, 31, v0' % t0); e('v_mul_u32_u24 v%d, 1280, v%d' % (t0, t0))
    e('v_lshl_add_u32 v%d, v%d, 4, v%d' % (t0, hf, t0)); e('v_add_u32 v%d, s59, v%d' % (t0, t0))
    e('s_mul_i32 s%d, s35, %d' % (sWV, 2 * PITCH))
    e('s_and_b32 s58, s2, 3'); e('s_lshl_b32 s58, s58, 1'); e('s_bfe_u32 s59, s2, 0x10003'); e('s_add_u32 s58, s58, s59')
    e('s_lshr_b32 s59, s2, 4')
    e('s_bfe_u32 s3, s2, 0x10002')
    e('s_waitcnt lgkmcnt(0)')
    e('s_cmp_eq_u32 s3, 0')
    e('s_cselect_b64 s[%d:%d], s[36:37], s[46:47]' % (sX, sX + 1))
    e('s_cselect_b64 s[%d:%d], s[38:39], s[48:49]' % (sK, sK + 1))
    e('s_cselect_b64 s[%d:%d], s[40:41], s[50:51]' % (sV, sV + 1))
    e('s_cselect_b64 s[%d:%d], s[42:43], s[52:53]' % (sN, sN + 1))
    e('s_cselect_b64 s[%d:%d], s[44:45], s[54:55]' % (sWO, sWO + 1))
    def addp(r, sreg):
        e('s_add_u32 s%d, s%d, s%d' % (r, r, sreg)); e('s_addc_u32 s%d, s%d, 0' % (r + 1, r + 1))
    def subb(r):
        e('s_sub_u32 s%d, s%d, %d' % (r, r, BIAS)); e('s_subb_u32 s%d, s%d, 0' % (r + 1, r + 1))
    e('s_mul_i32 s34, s59, 163840'); addp(sX, 34); srd(e, sX, 163840)
    for kk in range(40):
        e('buffer_load_dwordx4 %s, v%d, %s, 0 offen offset:%d' % (vr('a', 4 * kk, 4), t0, vr('s', sX, 4), kk * 32), tag='x%d' % kk)
    e('s_lshl_b32 s34, s58, 10'); addp(sN, 34); subb(sN); srd(e, sN, 640 * 8192 + BIAS)
    e('s_mov_b32 s%d, 0' % sNO); e('s_mov_b32 s%d, %d' % (sNH, 32 * 8192 - 1024)); e('s_mov_b32 s%d, %d' % (sNT, 64 * 8192))
    for tp in range(8):
        pre, four, post = dma_tile(tp, False)
        if tp == 5: e.wait_v({'x11'})
        for s in pre: e(s)
        for s in four: e(s, tag=tp)
        for s in post: e(s)
        if tp == 1:
            e('s_lshl_b32 s34, s59, 22'); e('s_lshl_b32 s35, s58, 19'); e('s_add_u32 s34, s34, s35')
            addp(sK, 34); subb(sK); srd(e, sK, 4 * 131072 + BIAS)
            addp(sV, 34); subb(sV); srd(e, sV, 4 * 131072 + BIAS)
            e('s_mul_i32 s34, s58, %d' % (512 * 1280)); addp(sWO, 34); subb(sWO)
            e('s_mov_b32 s%d, 0' % sKVH); e('s_mov_b32 s%d, 0' % sH)
            e('s_mov_b32 s%d, 0x%x' % (sTHR, fbits(65536.0)))
            e('s_mov_b32 s%d, 0x%x' % (sC, fbits(math.log2(math.e) / math.sqrt(128.0))))
            e('s_lshl_b32 s34, s3, 4'); e('s_add_u32 s34, s34, s59'); e('s_lshl_b32 s34, s34, 3'); e('s_add_u32 s34, s34, s58')
            e('s_mul_i32 s34, s34, 163840'); addp(56, 34)
    e.wait_v({0})
    e('s_mov_b32 s%d, s56' % sX); e('s_mov_b32 s%d, s57' % (sX + 1))
    e('s_barrier')
    m0 = mfmas(0)
    for j in range(PF): emit_reads(e, m0[j], j)
    stamp(e, 1)
    st0 = e.state()
    emit_steps(e, list(range(NV)), {})
    e.label('L_common')
    stc = e.state()
    emit_steps(e, [p for p in range(NV, 27) if p != PHANTOM], {})
    emit_item(e, ('STAMPH', 3))
    e('s_add_u32 s%d, s%d, 131072' % (sKVH, sKVH))
    e('s_add_u32 s%d, s%d, 1' % (sH, sH))
    e('s_cmp_eq_u32 s%d, 1' % sH); e('s_cbranch_scc1 L_v1')
    e('s_cmp_eq_u32 s%d, 2' % sH); e('s_cbranch_scc1 L_v2')
    e('s_cmp_eq_u32 s%d, 3' % sH); e('s_cbranch_scc1 L_v3')
    ste = e.state()
    assert ste[1] == st0[1] and ste[2] == st0[2], (ste[1:], st0[1:])
    extra = {}
    def put(items, g0, g1):
        for k, it in enumerate(items):
            extra.setdefault(g0 + k * (g1 - g0) // len(items), []).append(it)
    put(epilogue(3), 1, 16 * NV)
    for c in range(4): put(gout(c), (c + 1) * 128 + 3, (c + 1) * 128 + 3 + 32)
    emit_steps(e, list(range(27, 67)), extra)
    for it in gout(4): emit_item(e, it)
    if OPT['stamp']:
        stamp(e, 10)
        e('s_waitcnt vmcnt(0)'); stamp(e, 11)
        e('s_waitcnt lgkmcnt(0)')
        e('s_cmp_lg_u32 s%d, 0' % sWV); e('s_cbranch_scc1 L_end')
        e('s_load_dwordx2 s[56:57], s[0:1], 96'); e('s_waitcnt lgkmcnt(0)')
        e('s_lshl_b32 s34, s2, 6'); e('s_add_u32 s34, s34, 0x4000000'); addp(56, 34); srd(e, 56, 64)
        for i in range(16):
            e('v_mov_b32 v%d, s%d' % (32 + i, 60 + 2 * i))
        e('v_mov_b32 v48, 0')
        for i in range(4): e('buffer_store_dwordx4 v[%d:%d], v48, s[56:59], 0 offen offset:%d' % (32 + 4 * i, 35 + 4 * i, 16 * i))
    e.label('L_end')
    e('s_endpgm')
    for h in (1, 2, 3):
        e.label('L_v%d' % h)
        e.set_state(ste)
        extra = {}
        put(epilogue(h - 1), 1, 16 * NV)
        emit_steps(e, list(range(NV)), extra)
        e('s_branch L_common')
        s = e.state(); assert s[1] == stc[1] and s[2] == stc[2]
    for t in sorted(set(RARE)): emit_rare(e, t)

def gen_k2(e):
    e.label(K2)
    e.hist = []; e.lq = []; e.vq = []
    e('s_cmp_ge_u32 s2, 1280'); e('s_cbranch_scc1 L_end2')
    e('s_load_dwordx2 s[4:5], s[0:1], 96'); e('s_load_dwordx2 s[8:9], s[0:1], 80')
    e('s_mul_hi_u32 s12, s2, 0xcccccccd'); e('s_lshr_b32 s12, s12, 3')
    e('s_mul_i32 s13, s12, 10'); e('s_sub_u32 s13, s2, s13')
    e('s_and_b32 s14, s12, 3'); e('s_lshr_b32 s15, s12, 2')
    e('v_and_b32 v1, 7, v0'); e('v_bfe_u32 v2, v0, 3, 3'); e('v_lshrrev_b32 v3, 6, v0')
    e('v_lshl_add_u32 v1, v3, 3, v1')
    e('v_lshlrev_b32 v4, 4, v1'); e('v_lshl_add_u32 v4, v2, 9, v4')
    e('v_mul_u32_u24 v5, 2560, v1'); e('v_lshl_add_u32 v5, v2, 4, v5')
    e('s_mul_i32 s16, s14, 40960'); e('s_lshl_b32 s17, s13, 12'); e('s_add_u32 s16, s16, s17')
    e('s_mul_i32 s17, s15, %d' % (8 * 163840)); e('s_add_u32 s16, s16, s17')
    e('s_and_b32 s18, s15, 15'); e('s_lshl_b32 s18, s18, 2'); e('s_add_u32 s18, s18, s14'); e('s_mul_i32 s18, s18, %d' % (32 * 2560))
    e('s_lshr_b32 s19, s15, 4'); e('s_mul_i32 s19, s19, 1280'); e('s_add_u32 s18, s18, s19')
    e('s_lshl_b32 s19, s13, 7'); e('s_add_u32 s18, s18, s19')
    e('s_waitcnt lgkmcnt(0)')
    e('s_add_u32 s4, s4, s16'); e('s_addc_u32 s5, s5, 0'); srd(e, 4, 8 * 163840)
    srd(e, 8, 16 * 128 * 2560)
    for p in range(8):
        e('s_mov_b32 s20, %d' % (p * 163840))
        e('buffer_load_dwordx4 %s, v4, s[4:7], s20 offen' % vr('v', 8 + 4 * p, 4), tag=p)
    e('v_add_u32 v5, s18, v5')
    e('s_mov_b32 s21, 0xffff0000')
    for p in range(8):
        e.wait_v({p})
        for i in range(4):
            src = 8 + 4 * p + i
            if p == 0:
                e('v_lshlrev_b32 v%d, 16, v%d' % (40 + 2 * i, src)); e('v_and_b32 v%d, s21, v%d' % (41 + 2 * i, src))
            else:
                e('v_lshlrev_b32 v6, 16, v%d' % src); e('v_and_b32 v7, s21, v%d' % src)
                e('v_add_f32 v%d, v%d, v6' % (40 + 2 * i, 40 + 2 * i)); e('v_add_f32 v%d, v%d, v7' % (41 + 2 * i, 41 + 2 * i))
    for i in range(4): e('v_cvt_pk_bf16_f32 v%d, v%d, v%d' % (8 + i, 40 + 2 * i, 41 + 2 * i))
    e('buffer_store_dwordx4 v[8:11], v5, s[8:11], 0 offen')
    e.label('L_end2')
    e('s_endpgm')

def kd(name, nv, acc, ns=102):
    return '''.amdhsa_kernel %s
  .amdhsa_next_free_vgpr %d
  .amdhsa_next_free_sgpr %d
  .amdhsa_accum_offset %d
  .amdhsa_group_segment_fixed_size 0
  .amdhsa_kernarg_size 104
  .amdhsa_user_sgpr_count 2
  .amdhsa_user_sgpr_kernarg_segment_ptr 1
  .amdhsa_system_sgpr_workgroup_id_x 1
.end_amdhsa_kernel
''' % (name, nv, ns, acc)

def main():
    ref = open('cdna_kernels/%s.s.ref' % NAME).read().split('\n')
    head = [l for l in ref if l.startswith(';') and '@launch' not in l]
    e = Em()
    for l in head: e.raw(l)
    e.raw('; @launch kernel=%s grid=(256,1,1) block=(256,1,1) lds=%d' % (K1, LDS_BYTES))
    e.raw('; @launch kernel=%s grid=(1280,1,1) block=(256,1,1) lds=0' % K2)
    e.raw('.amdgcn_target "amdgcn-amd-amdhsa--gfx950"'); e.raw('.text')
    for n, g in ((K1, gen_k1), (K2, gen_k2)):
        e.raw('.globl %s' % n); e.raw('.p2align 8'); e.raw('.type %s,@function' % n)
        g(e)
    e.raw('.section .rodata,"a"'); e.raw('.p2align 6'); e.raw(kd(K1, 512, 256)); e.raw('.p2align 6'); e.raw(kd(K2, 48, 48, 32))
    open(sys.argv[1], 'w').write(e.text())
    print('pads', e.npad, 'lines', len(e.out))
main()
```

```python
import sys, struct, math
sys.path.insert(0, 'gen')
from asmlib import Em

NAME = 'concat_heads__mha_block_cached__mha_block_cached__near_ridge'
K1 = NAME + '_kernel'
K2 = 'reduce_partials_kernel'

OPT = dict(pre=0, prel=0, wpf=0, pin=0, pind=6, wnt=0, xnt=0, ant=0, gnt=0, stamp=0, nt=1, pf=6, nv=3, nodma=0, nobar=0, nost=0, stmod=0, stspan=120, stsame=0, wopf=0, pfnt=0, touch=0, rot=0, rt=0)
for a in sys.argv[2:]:
    k, v = a.split('='); OPT[k] = int(v)

PITCH = 2112; SLOT = 8 * PITCH; NSLOT = 9; BIAS = 4096
SCR = NSLOT * SLOT; LDS_BYTES = SCR + 4096
PF = OPT['pf']; NV = OPT['nv']
def fbits(x): return struct.unpack('<I', struct.pack('<f', x))[0]

vTS, vTV, vKE, vKO = 1, 4, 7, 10
vON, vOV, vOK, vOWO = 13, 15, 17, 19
vST, vL, vRL = 21, 22, 23
vE = [24, 25, 26, 27]; vTA, vTB, vT0, vT1 = 28, 29, 30, 31
QB = 32; OACC = 64; SB = [128, 144]; NEGM = 160; PB = [176, 184]; QACC = 192; GV = 128
OB = [('a', 160), ('a', 192), ('v', 192), ('v', 224)]
AF = 224
sK, sV, sN, sWO, sX, sWS = 4, 8, 12, 16, 20, 56
sWV, sKVH, sNO, sNH, sNT, sA, sB, sH, sTHR, sC = 24, 25, 26, 27, 28, 29, 30, 31, 32, 33

def vr(k, lo, n): return '%s[%d:%d]' % (k, lo, lo + n - 1)

class MF:
    def __init__(self, d, b, c, reads):
        self.d, self.b, self.c, self.reads = d, b, c, reads

def t_reads(base, slot, half, kb, T):
    off = (slot % 3) * SLOT + half * 1024 + kb * 4 * PITCH + T * 64
    a = 'v%d' % (base + slot // 3)
    return [('ds_read_b64_tr_b16', 0, 2, a, off), ('ds_read_b64_tr_b16', 2, 2, a, off + 512)]
def k_reads(slot, half, kk):
    off = (slot % 3) * SLOT + half * 1024 + (kk >> 1) * 64
    a = 'v%d' % ((vKO if kk & 1 else vKE) + slot // 3)
    return [('ds_read_b128', 0, 4, a, off)]

def qk(slot, half, t, c0):
    d = vr('v', SB[t & 1], 16)
    return [MF(d, vr('v', QB + 4 * kk, 4), (c0 if kk == 0 else d), k_reads(slot, half, kk)) for kk in range(8)]
def pv(slot, half, t):
    r = []
    for kb in range(2):
        for T in range(4):
            d = vr('v', OACC + 16 * T, 16)
            r.append(MF(d, vr('v', PB[t & 1] + 4 * kb, 4), ('0' if (t == 0 and kb == 0) else d),
                        t_reads(vTV, slot, half, kb, T)))
    return r

GACC = [('a', 0), ('a', 64), ('v', GV), ('v', OACC), ('v', GV)]
def mfmas(st, slot):
    k = st[0]
    if k in 'AW':
        i = st[1]
        order = [(kx, T) for kx in range(4) for T in range(4)]
        if i == 9: order = [(kx, T) for T in range(4) for kx in range(4)]
        r = []
        for kx, T in order:
            d = vr('v', QACC + 16 * T, 16)
            r.append(MF(d, vr('a', (4 * i + kx) * 4, 4), ('0' if (i == 0 and kx == 0) else d),
                        t_reads(vTS, slot, kx >> 1, kx & 1, T)))
        return r
    if k == 'G':
        c, ti = st[1], st[2]; ak, acc = GACC[c]
        ok, ob = OB[ti >> 1]
        order = [(kx, T) for kx in range(4) for T in range(4)]
        if c == 4 and ti == 7: order = [(kx, T) for T in range(4) for kx in range(4)]
        r = []
        for kx, T in order:
            d = vr(ak, acc + 16 * T, 16)
            r.append(MF(d, vr(ok, ob + ((ti & 1) * 4 + kx) * 4, 4), ('0' if (ti == 0 and kx == 0) else d),
                        t_reads(vTS, slot, kx >> 1, kx & 1, T)))
        return r
    i = st[1]
    if i == 0: return qk(slot, 0, 0, '0') + qk(slot, 1, 1, '0')
    if i == 15: return pv(slot, 0, 14) + pv(slot, 1, 15)
    return qk(slot, 1, i + 1, vr('v', NEGM, 16)) + pv(slot, 0, i - 1)

NT = ' nt' if OPT['nt'] else ''
vXO = 44
vXR = 48
def dma_tile(st, slot):
    ins = ['s_add_u32 m0, s%d, %d' % (sWV, slot * SLOT)]
    def four(srd0, v0, so0, srd1, v1, so1, mod=''):
        return ['buffer_load_dwordx4 v%d, %s, s%d offen%s lds' % (v0, vr('s', srd0, 4), so0, mod),
                'buffer_load_dwordx4 v%d, %s, s%d offen offset:1024%s lds' % (v1, vr('s', srd1, 4), so1, mod),
                'buffer_load_dwordx4 v%d, %s, s%d offen offset:%d%s lds' % (v0 + 1, vr('s', srd0, 4), so0, PITCH, mod),
                'buffer_load_dwordx4 v%d, %s, s%d offen offset:%d%s lds' % (v1 + 1, vr('s', srd1, 4), so1, PITCH + 1024, mod)]
    k = st[0]
    if k == 'G':
        o = st[2] * 81920 + st[1] * 256
        ins += ['s_mov_b32 s%d, %d' % (sA, o), 's_mov_b32 s%d, %d' % (sB, o + 40960 - 1024)]
        return ins, four(sN, vON, sA, sN, vON, sB, ' nt' * OPT['gnt']), []
    if k == 'A':
        o = st[1] * 64 * 8192
        ins += ['s_mov_b32 s%d, %d' % (sA, o), 's_mov_b32 s%d, %d' % (sB, o + 32 * 8192 - 1024)]
        return ins, four(sN, vON, sA, sN, vON, sB, ' nt' * OPT['ant']), []
    if k == 'W':
        ins += ['s_add_u32 s%d, s%d, s%d' % (sB, sNO, sNH)]
        return ins, four(sN, vON, sNO, sN, vON, sB, ' nt' * OPT['wnt']), ['s_add_u32 s%d, s%d, s%d' % (sNO, sNO, sNT)]
    if k == 'x':
        ins += ['s_mov_b32 s%d, %d' % (sA, st[1] * 128)]
        return ins, four(sX, vXO, sA, sX, vXO + 2, sA, ' nt' * OPT['xnt']), []
    if k == 'P':
        return ins, ['buffer_load_dwordx4 v%d, %s, s92 offen offset:%d lds' % (vST, vr('s', sWO, 4), 1024 * j) for j in range(4)], ['s_add_u32 s92, s92, 3072']
    t = st[1]; ho = st[2] * 131072
    h0 = (sK, vOK, 0) if t == 0 else (sV, vOV, t - 1)
    h1 = (sV, vOV, 15) if t == 15 else (sK, vOK, t + 1)
    ins += ['s_add_u32 s%d, s%d, %d' % (sA, sKVH, ho + h0[2] * 8192), 's_add_u32 s%d, s%d, %d' % (sB, sKVH, ho + h1[2] * 8192 - 1024)]
    return ins, four(h0[0], h0[1], sA, h1[0], h1[1], sB, NT), []

def dma_items(st, slot):
    pre, four, post = dma_tile(st, slot)
    it = [[('DMA', f, slot)] for f in four]
    it[0] = pre + it[0]; it[3] = it[3] + post
    return it

def x_reads(i, slot):
    return [('LDS', 'ds_read_b128 %s, v%d offset:%d' % (vr('a', (4 * i + kx) * 4, 4), vXR + (kx & 1) + 2 * (slot // 3), (slot % 3) * SLOT + (kx >> 1) * 64), 'xr%d' % i)
            for kx in range(4)]

def emit_reads(e, m, gi):
    f = AF + 4 * (gi % 8)
    for op, o, n, a, off in m.reads:
        e('%s %s, %s offset:%d' % (op, vr('a', f + o, n), a, off), tag=gi % 16)

def softmax_pairs(t):
    S = SB[t & 1]; P = PB[t & 1]; g = []
    for p in range(8):
        ea, eb = vE[(p & 1) * 2], vE[(p & 1) * 2 + 1]
        ex = ['v_exp_f32 v%d, v%d' % (ea, S + 2 * p), 'v_exp_f32 v%d, v%d' % (eb, S + 2 * p + 1)]
        if p == 0:
            rest = ['v_cvt_pk_bf16_f32 v%d, v%d, v%d' % (P + p, ea, eb), 'v_add_f32 v%d, v%d, v%d' % (vTA, ea, eb)]
        elif p == 1:
            rest = ['v_cvt_pk_bf16_f32 v%d, v%d, v%d' % (P + p, ea, eb), 'v_add_f32 v%d, v%d, v%d' % (vTB, ea, eb)]
        else:
            rest = ['v_add_f32 v%d, v%d, v%d' % (vTA, vTA, ea), 'v_cvt_pk_bf16_f32 v%d, v%d, v%d' % (P + p, ea, eb),
                    'v_add_f32 v%d, v%d, v%d' % (vTB, vTB, eb)]
        g.append((ex, rest))
    return g

def rowmax(S, dst):
    r = ['v_max3_f32 v%d, v%d, v%d, v%d' % (dst, S, S + 1, S + 2), 'v_max3_f32 v%d, v%d, v%d, v%d' % (vT1, S + 3, S + 4, S + 5)]
    for i in range(6, 16, 4):
        r.append('v_max3_f32 v%d, v%d, v%d, v%d' % (dst, dst, S + i, S + i + 1))
        if i + 2 < 16: r.append('v_max3_f32 v%d, v%d, v%d, v%d' % (vT1, vT1, S + i + 2, S + i + 3))
    r += ['v_max_f32 v%d, v%d, v%d' % (dst, dst, vT1), 'v_mov_b32 v%d, v%d' % (vT1, dst),
          'v_permlane32_swap_b32 v%d, v%d' % (dst, vT1), 'v_max_f32 v%d, v%d, v%d' % (dst, dst, vT1)]
    return r

RARE = []
def check(t, rs):
    return ['v_add_f32 v%d, v%d, v%d' % (vTA, vTA, vTB), 'v_cmp_nge_f32 vcc, s%d, v%d' % (sTHR, vTA),
            ('RARE', t, rs), 'v_add_f32 v%d, v%d, v%d' % (vL, vL, vTA)]

def emit_rare(e, t, rs):
    S = SB[t & 1]; S2 = SB[(t + 1) & 1]
    e.label('L_rare%s%d' % (rs, t))
    e.hist = []
    e('s_nop 15')
    for s in rowmax(S, vT0): e(s)
    e('v_max_f32 v%d, 0, v%d' % (vT0, vT0))
    e('v_sub_f32 v%d, 0, v%d' % (vT1, vT0))
    e('v_exp_f32 v%d, v%d' % (vT1, vT1))
    for i in range(16): e('v_sub_f32 v%d, v%d, v%d' % (S + i, S + i, vT0))
    if t < 15:
        for i in range(16): e('v_sub_f32 v%d, v%d, v%d' % (S2 + i, S2 + i, vT0))
        for i in range(16): e('v_sub_f32 v%d, v%d, v%d' % (NEGM + i, NEGM + i, vT0))
    for i in range(64): e('v_mul_f32 v%d, v%d, v%d' % (OACC + i, OACC + i, vT1))
    e('v_mul_f32 v%d, v%d, v%d' % (vL, vL, vT1))
    for ex, rest in softmax_pairs(t):
        for s in ex + rest: e(s)
    e('v_add_f32 v%d, v%d, v%d' % (vTA, vTA, vTB))
    e('s_nop 3')
    e('s_branch L_back%s%d' % (rs, t))

def epilogue(h):
    ok, ob = OB[h]; r = []
    for T in range(4):
        for p in range(8):
            a = OACC + 16 * T + 2 * p
            r += ['v_mul_f32 v%d, v%d, v%d' % (a, a, vRL), 'v_mul_f32 v%d, v%d, v%d' % (a + 1, a + 1, vRL)]
            if ok == 'v':
                r.append('v_cvt_pk_bf16_f32 v%d, v%d, v%d' % (ob + 8 * T + p, a, a + 1))
            else:
                r += ['v_cvt_pk_bf16_f32 v%d, v%d, v%d' % (a, a, a + 1), 'v_accvgpr_write_b32 a%d, v%d' % (ob + 8 * T + p, a)]
    return r

def qconv(T):
    r = []
    for p in range(8):
        a = QACC + 16 * T + 2 * p
        r += ['v_mul_f32 v%d, s%d, v%d' % (a, sC, a), 'v_mul_f32 v%d, s%d, v%d' % (a + 1, sC, a + 1),
              'v_cvt_pk_bf16_f32 v%d, v%d, v%d' % (QB + 8 * T + p, a, a + 1)]
    return r

def gout(c):
    ak, acc = GACC[c]; r = []
    for T in range(4):
        if T % 2 == 0: r.append('s_mov_b32 s34, %d' % ((c * 4 + T) * 2048))
        for j in range(2):
            for p in range(4):
                a = acc + 16 * T + 8 * j + 2 * p
                d = QB + 8 * T + 4 * j + p
                if ak == 'a':
                    r += ['v_accvgpr_read_b32 v%d, a%d' % (d, a), 'v_accvgpr_read_b32 v%d, a%d' % (vE[p], a + 1),
                          'v_cvt_pk_bf16_f32 v%d, v%d, v%d' % (d, d, vE[p])]
                else:
                    r.append('v_cvt_pk_bf16_f32 v%d, v%d, v%d' % (d, a, a + 1))
            r.append('buffer_store_dwordx4 %s, v%d, %s, s34 offen offset:%d%s' %
                     (vr('v', QB + 8 * T + 4 * j, 4), vST, vr('s', sWS, 4), ((T & 1) * 2 + j) * 1024, ['', ' nt', ' sc1', ' sc0 sc1', ' sc0 sc1 nt'][OPT['stmod']]))
    return r

def spread(gaps, items, g0, g1):
    n = g1 - g0
    for k, it in enumerate(items):
        gaps[g0 + k * n // len(items)].append(it)

def emit_item(e, it):
    if isinstance(it, tuple):
        if it[0] == 'RARE':
            e('s_cbranch_vccnz L_rare%s%d' % (it[2], it[1])); e.label('L_back%s%d' % (it[2], it[1])); RARE.append((it[1], it[2]))
        elif it[0] == 'DMA':
            if OPT['nodma']: e.vq.append(it[2])
            else: e(it[1], tag=it[2])
        elif it[0] == 'LDS': e(it[1], tag=it[2])
        elif it[0] == 'WAITV': e.wait_v({it[1]})
        elif it[0] == 'WAITL': e.wait_l({it[1]})
        elif it[0] == 'NEXT':
            e('s_add_u32 s%d, s%d, 2' % (sA, sH))
            e('s_lshl_b32 s%d, s%d, 8' % (sNO, sA))
            e('s_cmp_lg_u32 s%d, 2' % sH)
            e('s_cbranch_scc1 L_notlast'); mark = len(e.out)
            e('s_mov_b32 s%d, s%d' % (sN, sWO)); e('s_mov_b32 s%d, s%d' % (sN + 1, sWO + 1))
            e('s_mov_b32 s%d, 0' % sNO); e('s_mov_b32 s%d, %d' % (sNH, 40960 - 1024)); e('s_mov_b32 s%d, %d' % (sNT, 81920))
            e('v_mov_b32 v%d, v%d' % (vON, vOWO)); e('v_mov_b32 v%d, v%d' % (vON + 1, vOWO + 1))
            for x in e.hist[-(len(e.out) - mark):]: x.ws = 0
            e.label('L_notlast')
        elif it[0] == 'STAMP':
            stamp(e, it[1])
    elif it == 's_barrier' and OPT['nobar']: pass
    elif it.startswith('buffer_store') and OPT['nost']: pass
    else:
        e(it, tag='st' if it.startswith('buffer_store') else None)

def stamp(e, idx):
    if not OPT['stamp']: return
    e('s_memtime s[%d:%d]' % (60 + 2 * idx, 61 + 2 * idx))
    r = 88 if idx == 0 else 36 + 2 * idx
    e('s_memrealtime s[%d:%d]' % (r, r + 1))

def flat(groups): return [x for g in groups for x in g]

class Seg:
    def __init__(self, L, n, slot0, rs, auto_dma=True):
        self.L, self.n, self.slot0, self.rs = L, n, slot0, rs
        self.steps = [i for i in range(n) if L[i][0] != 'P']
        self.g = {}
        self.auto = auto_dma
    def slot(self, i): return (self.slot0 + i) % NSLOT
    def nxt(self, i):
        j = i + 1
        if j < len(self.L) and self.L[j][0] == 'P': j += 1
        return j if j < len(self.L) else None
    def lin(self, i, g): return self.steps.index(i) * 16 + g
    def add(self, lin, items, front=False):
        k = (self.steps[lin // 16], lin % 16)
        self.g[k] = (list(items) + self.g.get(k, [])) if front else (self.g.get(k, []) + list(items))
    def put(self, items, l0, l1):
        for k, it in enumerate(items): self.add(l0 + k * (l1 - l0) // len(items), it if isinstance(it, list) else [it])
    def find(self, st): return [i for i in self.steps if self.L[i][:len(st)] == st][0]

def plan_attn(sg, qc):
    isx = lambda si: sg.L[sg.steps[si]][0] == 'X'
    for t in range(16):
        i = sg.find(('X', t)); si = sg.steps.index(i); l = si * 16
        if t == 0:
            assert not isx(si + 1)
            it = rowmax(SB[0], vT0) + ['v_sub_f32 v%d, 0, v%d' % (vT0, vT0)]
            it += ['v_add_f32 v%d, v%d, v%d' % (SB[0] + j, SB[0] + j, vT0) for j in range(16)]
            for ex, rest in softmax_pairs(0): it += ex + rest
            it += ['v_add_f32 v%d, v%d, v%d' % (vL, vTA, vTB)]
            it += ['v_mov_b32 v%d, v%d' % (NEGM + j, vT0) for j in range(16)]
            it += ['v_add_f32 v%d, v%d, v%d' % (SB[1] + j, SB[1] + j, vT0) for j in range(16)]
            sg.put(it, l + 10, l + 26)
            continue
        l0 = l - 8 if (not isx(si - 1) and t != 1) else l
        l1 = l + 24 if (t < 14 and not isx(si + 1)) else l + 16
        if t == 15: l0, l1 = l - 16, l + 8
        gr = []
        for ex, rest in softmax_pairs(t): gr += [ex, rest]
        if t == 15 and qc:
            sg.put(gr[:6], l0, l0 + 6); sg.put(gr[6:], l, l + 8)
        else: sg.put(gr, l0, l1)
        sg.add(l1 - 1, check(t, sg.rs))
        if t == 15:
            sg.add(l + 9, ['v_mov_b32 v%d, v%d' % (vT1, vL)])
            sg.add(l + 10, ['v_permlane32_swap_b32 v%d, v%d' % (vL, vT1)])
            sg.add(l + 11, ['v_add_f32 v%d, v%d, v%d' % (vL, vL, vT1)])
            sg.add(l + 12, ['v_rcp_f32 v%d, v%d' % (vRL, vL)])
            if qc:
                sg.put(qconv(0), l - 10, l - 5); sg.put(qconv(1), l - 5, l); sg.put(qconv(2) + qconv(3), l + 8, l + 16)

def plan_epi(sg, h, l0):
    ep = epilogue(h); n = len(ep) * 3 // 4
    sg.put(ep[:n], l0 + 1, l0 + 26); sg.put(ep[n:], l0 + 42, l0 + 48)

def emit_steps(e, sg, s0, s1):
    L = sg.L
    for i in sg.steps[s0:s1]:
        st = L[i]
        e.comment('---- step %d : %s' % (i, st))
        ms = mfmas(st, sg.slot(i))
        ni = sg.nxt(i)
        nms = mfmas(L[ni], sg.slot(ni)) if ni is not None else []
        gaps = [list(sg.g.get((i, g), [])) for g in range(16)]
        tiles = []
        if sg.auto:
            if i > 0 and L[i - 1][0] == 'P' and i + 7 < len(L): tiles.append(i + 7)
            if i + 8 < len(L) and (L[i + 8][0] != 'P' or OPT['wpf']): tiles.append(i + 8)
        if ni is not None: gaps[8] = [('WAITV', sg.slot(ni)), 's_barrier'] + gaps[8]
        d = flat([dma_items(L[tp], sg.slot(tp)) for tp in tiles])
        slots = [9, 11, 13, 15] if len(tiles) == 1 else [9, 10, 11, 12, 13, 14, 15, 15]
        if len(tiles) == 2: d = d[:6] + [d[6] + d[7]]
        for q, grp in enumerate(d): gaps[slots[q]] = grp + gaps[slots[q]]
        for g, m in enumerate(ms):
            if g % 2 == 0: e.wait_l({g, g + 1})
            e('v_mfma_f32_32x32x16_bf16 %s, %s, %s, %s' % (m.d, vr('a', AF + 4 * (g % 8), 4), m.b, m.c))
            j = g + PF
            if j < 16: emit_reads(e, ms[j], j)
            elif ni is not None:
                assert g >= 9
                emit_reads(e, nms[j - 16], j)
            for it in gaps[g]: emit_item(e, it)

def parse_order(txt, other, ho=0):
    r = []; o = iter(other); t = 0
    for ch in txt:
        if ch == 'X': r.append(('X', t, ho)); t += 1
        elif ch == 'P': r.append(('P',))
        else: r.append(next(o))
    return r
BODY = 'WXWXXWXXWXPWXXWXXWXWXXWXXWX'
BODY3 = 'GXGXXGXXGXGXGXXGXGXGXXGXGXGX'
assert len(BODY) == 27 and BODY.count('X') == 16 and BODY3.count('X') == 16 and BODY3.count('G') == 12
assert BODY[:8].replace('W', 'G') == BODY3[:8]

def srd(e, r, nbytes):
    e('s_mov_b32 s%d, %d' % (r + 2, nbytes)); e('s_mov_b32 s%d, 0x00020000' % (r + 3))

def gen_k1(e):
    e.label(K1)
    e('s_cmp_ge_u32 s2, 256'); e('s_cbranch_scc1 L_end')
    e('s_load_dwordx16 s[36:51], s[0:1], 0')
    e('s_load_dwordx4 s[52:55], s[0:1], 64')
    e('s_load_dwordx2 s[56:57], s[0:1], 96')
    if OPT['stamp']:
        stamp(e, 0)
    L = 32
    e('v_lshrrev_b32 v%d, 6, v0' % L)
    e('v_and_b32 v0, 63, v0')
    e('v_readfirstlane_b32 s35, v%d' % L)
    lane = 0
    r_, c_, hf, g1, s_, pos_, t0, t1, cs, ss = range(33, 43)
    e('v_bfe_u32 v%d, v0, 2, 2' % r_); e('v_and_b32 v%d, 3, v0' % c_); e('v_lshrrev_b32 v%d, 5, v0' % hf)
    e('v_bfe_u32 v%d, v0, 4, 1' % g1); e('v_lshrrev_b32 v%d, 4, v0' % s_); e('v_and_b32 v%d, 15, v0' % pos_)
    def swap2(dst, src):
        e('v_and_b32 v%d, 1, v%d' % (t0, src)); e('v_lshlrev_b32 v%d, 1, v%d' % (t0, t0))
        e('v_lshrrev_b32 v%d, 1, v%d' % (t1, src)); e('v_or_b32 v%d, v%d, v%d' % (dst, t0, t1))
    swap2(cs, c_); swap2(ss, s_)
    e('v_mul_u32_u24 v%d, %d, v%d' % (t0, PITCH, r_))
    e('v_lshl_add_u32 v%d, v%d, 8, v%d' % (t0, hf, t0))
    e('v_lshl_add_u32 v%d, v%d, 5, v%d' % (t0, g1, t0))
    e('v_lshl_add_u32 v%d, v%d, 3, v%d' % (vTV, c_, t0))
    e('v_lshl_add_u32 v%d, v%d, 3, v%d' % (vTS, cs, t0))
    e('v_and_b32 v%d, 7, v0' % t0); e('v_mul_u32_u24 v%d, %d, v%d' % (t0, PITCH, t0))
    e('v_bfe_u32 v%d, v0, 3, 2' % t1)
    e('v_lshl_add_u32 v%d, v%d, 8, v%d' % (t0, t1, t0))
    e('v_xor_b32 v%d, v%d, v%d' % (t1, t1, hf))
    e('v_lshl_add_u32 v%d, v%d, 4, v%d' % (vKE, t1, t0))
    e('v_xor_b32 v%d, 2, v%d' % (t1, t1))
    e('v_lshl_add_u32 v%d, v%d, 4, v%d' % (vKO, t1, t0))
    for b in (vTS, vTV, vKE, vKO):
        e('v_add_u32 v%d, %d, v%d' % (b + 1, 3 * SLOT, b)); e('v_add_u32 v%d, %d, v%d' % (b + 2, 6 * SLOT, b))
    e('s_lshr_b32 s58, s35, 1'); e('s_lshl_b32 s58, s58, 4'); e('s_and_b32 s59, s35, 1'); e('s_lshl_b32 s59, s59, 1')
    e('s_add_u32 s58, s58, s59')
    e('v_lshlrev_b32 v%d, 4, v%d' % (pos_, pos_)); e('v_add_u32 v%d, %d, v%d' % (t1, BIAS, pos_))
    e('v_lshl_add_u32 v%d, v%d, 2, s58' % (t0, s_))
    e('v_lshl_add_u32 v%d, v%d, 8, v%d' % (vOV, t0, t1)); e('v_add_u32 v%d, %d, v%d' % (vOV + 1, (256 - PITCH) & 0xffffffff, vOV))
    e('v_mul_u32_u24 v%d, 1280, v%d' % (vOWO, t0)); e('v_add_u32 v%d, v%d, v%d' % (vOWO, vOWO, t1))
    e('v_add_u32 v%d, %d, v%d' % (vOWO + 1, (1280 - PITCH) & 0xffffffff, vOWO))
    e('v_lshl_add_u32 v%d, v%d, 2, s58' % (t0, ss))
    e('v_lshl_add_u32 v%d, v%d, 13, v%d' % (vON, t0, t1)); e('v_add_u32 v%d, %d, v%d' % (vON + 1, 8192 - PITCH, vON))
    e('s_lshl_b32 s59, s35, 1')
    e('v_lshl_add_u32 v%d, v%d, 3, s59' % (t0, s_))
    e('v_lshlrev_b32 v%d, 4, v%d' % (t1, s_)); e('v_xor_b32 v%d, v%d, v%d' % (t1, t1, pos_)); e('v_add_u32 v%d, %d, v%d' % (t1, BIAS, t1))
    e('v_lshl_add_u32 v%d, v%d, 8, v%d' % (vOK, t0, t1)); e('v_add_u32 v%d, %d, v%d' % (vOK + 1, (256 - PITCH) & 0xffffffff, vOK))
    e('s_mul_i32 s59, s35, 40960')
    e('v_lshl_add_u32 v%d, v0, 4, s59' % vST)
    e('v_lshrrev_b32 v%d, 3, v0' % t0); e('v_mul_u32_u24 v%d, 1280, v%d' % (t0, t0))
    e('v_and_b32 v%d, 7, v0' % t1); e('v_xor_b32 v%d, v%d, v%d' % (t1, t1, s_))
    e('v_lshl_add_u32 v%d, v%d, 4, v%d' % (t0, t1, t0)); e('v_add_u32 v%d, s59, v%d' % (vXO, t0))
    e('v_add_u32 v%d, %d, v%d' % (vXO + 2, 8 * 1280 - 1024, vXO)); e('v_add_u32 v%d, %d, v%d' % (vXO + 1, 16 * 1280 - PITCH, vXO))
    e('v_add_u32 v%d, %d, v%d' % (vXO + 3, 24 * 1280 - PITCH - 1024, vXO))
    e('s_mul_i32 s%d, s35, %d' % (sWV, 2 * PITCH))
    e('s_and_b32 s58, s2, 3'); e('s_lshl_b32 s58, s58, 1'); e('s_bfe_u32 s59, s2, 0x10003'); e('s_add_u32 s58, s58, s59')
    e('s_lshr_b32 s59, s2, 4')
    e('s_bfe_u32 s3, s2, 0x10002')
    e('s_waitcnt lgkmcnt(0)')
    e('s_cmp_eq_u32 s3, 0')
    e('s_cselect_b64 s[%d:%d], s[36:37], s[46:47]' % (sX, sX + 1))
    e('s_cselect_b64 s[%d:%d], s[38:39], s[48:49]' % (sK, sK + 1))
    e('s_cselect_b64 s[%d:%d], s[40:41], s[50:51]' % (sV, sV + 1))
    e('s_cselect_b64 s[%d:%d], s[42:43], s[52:53]' % (sN, sN + 1))
    e('s_cselect_b64 s[%d:%d], s[44:45], s[54:55]' % (sWO, sWO + 1))
    def addp(r, sreg):
        e('s_add_u32 s%d, s%d, s%d' % (r, r, sreg)); e('s_addc_u32 s%d, s%d, 0' % (r + 1, r + 1))
    def subb(r):
        e('s_sub_u32 s%d, s%d, %d' % (r, r, BIAS)); e('s_subb_u32 s%d, s%d, 0' % (r + 1, r + 1))
    e('s_mul_i32 s34, s59, 163840'); addp(sX, 34); srd(e, sX, 163840)
    e('s_lshl_b32 s34, s58, 10'); addp(sN, 34); subb(sN); srd(e, sN, 640 * 8192 + BIAS)
    XS = [2, 6, 3, 7, 4, 5, 6, 7, 8, 0]
    AS = lambda i: (8 + i) % 9
    def issue(st, slot):
        for it in flat(dma_items(st, slot)): emit_item(e, it)
    for k, i in (('x', 0), ('A', 0), ('x', 1), ('x', 2), ('A', 1), ('x', 3), ('x', 4), ('x', 5), ('A', 2)):
        issue((k, i), XS[i] if k == 'x' else AS(i))
    e('v_mul_u32_u24 v%d, %d, v%d' % (t0, PITCH, g1)); e('v_bfe_u32 v%d, v0, 3, 1' % t1); e('v_lshl_add_u32 v%d, v%d, 10, v%d' % (t0, t1, t0))
    e('v_and_b32 v%d, 7, v0' % t1); e('v_lshl_add_u32 v%d, v%d, 7, v%d' % (t0, t1, t0)); e('v_add_u32 v%d, s%d, v%d' % (t0, sWV, t0))
    e('v_bfe_u32 v%d, v0, 1, 2' % t1); e('v_xor_b32 v%d, v%d, v%d' % (t1, t1, hf))
    e('v_lshl_add_u32 v%d, v%d, 4, v%d' % (vXR, t1, t0))
    e('v_xor_b32 v%d, 2, v%d' % (t1, t1)); e('v_lshl_add_u32 v%d, v%d, 4, v%d' % (vXR + 1, t1, t0))
    for j in (1, 2):
        e('v_add_u32 v%d, %d, v%d' % (vXR + 2 * j, 3 * j * SLOT, vXR)); e('v_add_u32 v%d, %d, v%d' % (vXR + 2 * j + 1, 3 * j * SLOT, vXR + 1))
    e('s_mov_b32 s%d, 256' % sNO); e('s_mov_b32 s%d, %d' % (sNH, 32 * 8192 - 1024)); e('s_mov_b32 s%d, %d' % (sNT, 64 * 8192))
    e('s_lshl_b32 s34, s59, 22'); e('s_lshl_b32 s35, s58, 19'); e('s_add_u32 s34, s34, s35')
    addp(sK, 34); subb(sK); srd(e, sK, 4 * 131072 + BIAS)
    addp(sV, 34); subb(sV); srd(e, sV, 4 * 131072 + BIAS)
    e('s_mul_i32 s34, s58, %d' % (512 * 1280)); addp(sWO, 34); subb(sWO); srd(e, sWO, 512 * 1280 + BIAS)
    e('s_and_b32 s92, s59, 3'); e('s_mul_i32 s92, s92, 163840'); e('s_lshr_b32 s93, s59, 2'); e('s_mul_i32 s93, s93, 10240')
    e('s_add_u32 s92, s92, s93'); e('s_add_u32 s92, s92, %d' % BIAS)
    e('s_mov_b32 s%d, 0' % sKVH); e('s_mov_b32 s%d, 0' % sH)
    e('s_mov_b32 s%d, 0x%x' % (sTHR, fbits(65536.0)))
    e('s_mov_b32 s%d, 0x%x' % (sC, fbits(math.log2(math.e) / math.sqrt(128.0))))
    e('s_lshl_b32 s34, s3, 4'); e('s_add_u32 s34, s34, s59'); e('s_lshl_b32 s34, s34, 3'); e('s_add_u32 s34, s34, s58')
    e('s_mov_b32 s95, s59'); e('s_mul_i32 s34, s34, 163840'); addp(sWS, 34); srd(e, sWS, 163840)
    pre = []
    if OPT['pre']:
        e('s_lshr_b32 s35, s%d, 12' % sWV)
        e('s_lshl_b32 s34, s95, 2'); e('s_add_u32 s34, s34, s35')
        e('s_mul_i32 s93, s34, 10240'); e('s_add_u32 s93, s93, %d' % BIAS)
        e('s_mul_i32 s94, s34, 81920'); e('s_add_u32 s94, s94, %d' % BIAS)
        if OPT['pre'] == 1:
            e('v_lshlrev_b32 v54, 4, v0')
            for j in range(10):
                pre.append(['s_add_u32 s34, s94, %d' % (j * 8192), ('DMA', 'buffer_load_dwordx4 v[64:67], v54, %s, s34 offen' % vr('s', sN, 4), 'pf')])
            for j in range(10):
                pre.append(['s_add_u32 s34, s93, %d' % (j * 1024), ('DMA', 'buffer_load_dwordx4 v[64:67], v54, %s, s34 offen' % vr('s', sWO, 4), 'pf')])
        else:
            sh = 7 if OPT['pre'] == 2 else 6; n = 10240 >> sh; per = 1024 >> sh
            for j in range((n + 63) // 64):
                e('v_add_u32 v54, %d, v0' % (64 * j)); e('v_min_u32 v54, %d, v54' % (n - 1))
                e('v_lshlrev_b32 v%d, %d, v54' % (55 + j, sh))
                e('v_lshrrev_b32 v63, %d, v54' % (10 - sh)); e('v_and_b32 v54, %d, v54' % (per - 1)); e('v_lshlrev_b32 v54, %d, v54' % sh)
                e('v_lshl_add_u32 v%d, v63, 13, v54' % (59 + j))
            for j in range((n + 63) // 64): pre.append([('DMA', 'buffer_load_dword v64, v%d, %s, s94 offen' % (59 + j, vr('s', sN, 4)), 'pf')])
            for j in range((n + 63) // 64): pre.append([('DMA', 'buffer_load_dword v64, v%d, %s, s93 offen' % (55 + j, vr('s', sWO, 4)), 'pf')])
        if OPT['prel'] == 0:
            for it in flat(pre): emit_item(e, it)
    Wl = [('W', i) for i in range(10)]
    B0 = parse_order(BODY, Wl); B1 = parse_order(BODY, Wl, 1)
    sa = Seg([('A', i) for i in range(10)] + B0[:9], 10, 8, 'a', auto_dma=False)
    def xr(i): return [('WAITV', XS[i])] + x_reads(i, XS[i])
    def dm(st, slot, l, after=None):
        d = dma_items(st, slot)
        if after is not None: d[0] = [('WAITL', 'xr%d' % after)] + d[0]
        sa.put(d, l, l + 4)
    for it in xr(0): emit_item(e, it)
    e.wait_v({AS(0)}); e('s_barrier')
    m0 = mfmas(('A', 0), AS(0))
    for j in range(PF): emit_reads(e, m0[j], j)
    e.wait_l({'xr0'}); issue(('A', 3), AS(3))
    stamp(e, 1)
    sa.add(0, xr(1)); sa.add(2, xr(2)); dm(('x', 6), XS[6], 3, 1); dm(('A', 4), AS(4), 7, 2)
    sa.add(9, xr(3)); sa.add(11, xr(4)); dm(('x', 7), XS[7], 12, 3); dm(('A', 5), AS(5), 16, 4)
    sa.add(17, xr(5)); dm(('A', 6), AS(6), 20, 5); dm(('x', 8), XS[8], 16 + 9)
    dm(('x', 9), XS[9], 32 + 9); sa.add(32 + 13, xr(6)); dm(('A', 7), AS(7), 48 + 1, 6)
    dm(B0[1], 1, 48 + 9); sa.add(48 + 13, xr(7)); dm(('A', 8), AS(8), 64 + 1, 7)
    sa.add(64 + 9, xr(8)); dm(('A', 9), AS(9), 64 + 12, 8); sa.add(80 + 1, xr(9)); dm(B0[0], 0, 80 + 4, 9)
    dm(B0[2], 2, 80 + 9); dm(B0[3], 3, 80 + 13)
    for j in range(4, 8): sa.put(dma_items(B0[j], j), (j + 2) * 16 + 9, (j + 2) * 16 + 16)
    sa.put(qconv(0), 144 + 6, 144 + 10); sa.put(qconv(1), 144 + 10, 144 + 14); sa.put(qconv(2), 144 + 14, 144 + 16)
    if OPT['pre'] and OPT['prel']: sa.put(pre, OPT['prel'], OPT['prel'] + 2 * len(pre))
    emit_steps(e, sa, 0, 10)
    for it in qconv(3): e(it)
    def body(h):
        sg = Seg(B0 + B1[:8], 27, 0, 'b')
        plan_attn(sg, True)
        if h > 0: plan_epi(sg, h - 1, 0)
        sg.add(0, [('STAMP', 2 + h)])
        sg.add(sg.lin(18, 2), [('NEXT',)])
        if OPT['pin']:
            def grp(mod, last):
                g = [[('DMA', 'buffer_load_dwordx4 v%d, %s, s92 offen offset:%d%s lds' % (vST, vr('s', sWO, 4), 1024 * j, mod), 'pf')] for j in range(4)]
                g[0] = ['s_mov_b32 m0, %d' % SCR] + g[0]
                if last: g[3].append('s_add_u32 s92, s92, 3072')
                return g
            sg.put(grp(' nt', False), 5 * 16 + 1, 5 * 16 + 8)
            sg.put(grp('', True), (5 + OPT['pind']) * 16 + 1, (5 + OPT['pind']) * 16 + 8)
        return sg
    sb = body(0)
    emit_steps(e, sb, 0, NV)
    e.label('L_common')
    stc = e.state()
    emit_steps(e, sb, NV, 26)
    e('s_add_u32 s%d, s%d, 131072' % (sKVH, sKVH))
    e('s_add_u32 s%d, s%d, 1' % (sH, sH))
    e('s_cmp_eq_u32 s%d, 1' % sH); e('s_cbranch_scc1 L_v1')
    e('s_cmp_eq_u32 s%d, 2' % sH); e('s_cbranch_scc1 L_v2')
    ste = e.state()
    G1 = [('G', 0, t) for t in range(4)] + [('G', 1, t) for t in range(4)] + [('G', 0, 4), ('G', 0, 5), ('G', 1, 4), ('G', 1, 5)]
    G2 = [('G', 2, t) for t in range(6)] + [('G', c, t) for c in range(3) for t in (6, 7)] + [('G', c, t) for c in (3, 4) for t in range(8)]
    sg = Seg(parse_order(BODY3, G1) + G2, 56, 0, 'c')
    plan_attn(sg, False); plan_epi(sg, 2, 0)
    sg.add(0, [('STAMP', 5)]); sg.add(28 * 16, [('STAMP', 6)])
    sg.put(epilogue(3), 28 * 16 + 1, 31 * 16)
    for c, (a0, a1) in enumerate(((36, 40), (40, 44), (44, 48), (48, 55))): sg.put(gout(c), a0 * 16 + 3, a1 * 16)
    go = gout(4); n = len(go) // 4
    sg.put(go[:n + 1], 55 * 16 + 7, 55 * 16 + 11); sg.put(go[n + 1:2 * n + 1], 55 * 16 + 11, 55 * 16 + 15)
    emit_steps(e, sg, 0, 56)
    for it in go[2 * n + 1:]: emit_item(e, it)
    if OPT['stamp']:
        stamp(e, 7)
        e('s_waitcnt vmcnt(0)'); stamp(e, 8)
        e('s_waitcnt lgkmcnt(0)')
        e('s_cmp_lg_u32 s%d, 0' % sWV); e('s_cbranch_scc1 L_end')
        e('s_load_dwordx2 s[56:57], s[0:1], 96'); e('s_waitcnt lgkmcnt(0)')
        e('s_lshl_b32 s34, s2, 7'); e('s_add_u32 s34, s34, 0x4000000'); addp(56, 34); srd(e, 56, 128)
        for i in range(12):
            e('v_mov_b32 v%d, s%d' % (32 + i, 60 + 2 * i))
            e('v_mov_b32 v%d, s%d' % (48 + i, 88 if i == 0 else 36 + 2 * min(i, 9)))
        e('v_mov_b32 v64, 0')
        for i in (0, 1, 2, 4, 5, 6): e('buffer_store_dwordx4 v[%d:%d], v64, s[56:59], 0 offen offset:%d' % (32 + 4 * i, 35 + 4 * i, 16 * i))
    e.label('L_end')
    e('s_endpgm')
    for h in (1, 2):
        e.label('L_v%d' % h)
        e.set_state(ste)
        emit_steps(e, body(h), 0, NV)
        e('s_branch L_common')
        s = e.state(); assert s[1] == stc[1] and s[2] == stc[2], (s[1:], stc[1:])
    for t, rs in sorted(set(RARE)): emit_rare(e, t, rs)

def gen_k2(e):
    e.label(K2)
    e.hist = []; e.lq = []; e.vq = []
    e('s_cmp_ge_u32 s2, 1280'); e('s_cbranch_scc1 L_end2')
    e('s_load_dwordx2 s[4:5], s[0:1], 96'); e('s_load_dwordx2 s[8:9], s[0:1], 80')
    e('s_mul_hi_u32 s12, s2, 0xcccccccd'); e('s_lshr_b32 s12, s12, 3')
    e('s_mul_i32 s13, s12, 10'); e('s_sub_u32 s13, s2, s13')
    e('s_and_b32 s14, s12, 3'); e('s_lshr_b32 s15, s12, 2')
    e('v_and_b32 v1, 7, v0'); e('v_bfe_u32 v2, v0, 3, 3'); e('v_lshrrev_b32 v3, 6, v0')
    e('v_lshl_add_u32 v1, v3, 3, v1')
    e('v_lshlrev_b32 v4, 4, v1'); e('v_lshl_add_u32 v4, v2, 9, v4')
    e('v_mul_u32_u24 v5, 2560, v1'); e('v_lshl_add_u32 v5, v2, 4, v5')
    e('s_mul_i32 s16, s14, 40960'); e('s_lshl_b32 s17, s13, 12'); e('s_add_u32 s16, s16, s17')
    e('s_mul_i32 s17, s15, %d' % (8 * 163840)); e('s_add_u32 s16, s16, s17')
    e('s_and_b32 s18, s15, 15'); e('s_lshl_b32 s18, s18, 2'); e('s_add_u32 s18, s18, s14'); e('s_mul_i32 s18, s18, %d' % (32 * 2560))
    e('s_lshr_b32 s19, s15, 4'); e('s_mul_i32 s19, s19, 1280'); e('s_add_u32 s18, s18, s19')
    e('s_lshl_b32 s19, s13, 7'); e('s_add_u32 s18, s18, s19')
    e('s_waitcnt lgkmcnt(0)')
    e('s_add_u32 s4, s4, s16'); e('s_addc_u32 s5, s5, 0'); srd(e, 4, 8 * 163840)
    srd(e, 8, 16 * 128 * 2560)
    for p in range(8):
        e('s_mov_b32 s20, %d' % (p * 163840))
        e('buffer_load_dwordx4 %s, v4, s[4:7], s20 offen' % vr('v', 8 + 4 * p, 4), tag=p)
    e('v_add_u32 v5, s18, v5')
    e('s_mov_b32 s21, 0xffff0000')
    for p in range(8):
        e.wait_v({p})
        for i in range(4):
            src = 8 + 4 * p + i
            if p == 0:
                e('v_lshlrev_b32 v%d, 16, v%d' % (40 + 2 * i, src)); e('v_and_b32 v%d, s21, v%d' % (41 + 2 * i, src))
            else:
                e('v_lshlrev_b32 v6, 16, v%d' % src); e('v_and_b32 v7, s21, v%d' % src)
                e('v_add_f32 v%d, v%d, v6' % (40 + 2 * i, 40 + 2 * i)); e('v_add_f32 v%d, v%d, v7' % (41 + 2 * i, 41 + 2 * i))
    for i in range(4): e('v_cvt_pk_bf16_f32 v%d, v%d, v%d' % (8 + i, 40 + 2 * i, 41 + 2 * i))
    e('buffer_store_dwordx4 v[8:11], v5, s[8:11], 0 offen')
    e.label('L_end2')
    e('s_endpgm')

def kd(name, nv, acc, ns=102):
    return '''.amdhsa_kernel %s
  .amdhsa_next_free_vgpr %d
  .amdhsa_next_free_sgpr %d
  .amdhsa_accum_offset %d
  .amdhsa_group_segment_fixed_size 0
  .amdhsa_kernarg_size 104
  .amdhsa_user_sgpr_count 2
  .amdhsa_user_sgpr_kernarg_segment_ptr 1
  .amdhsa_system_sgpr_workgroup_id_x 1
.end_amdhsa_kernel
''' % (name, nv, ns, acc)

def main():
    ref = open('cdna_kernels/%s.s.ref' % NAME).read().split('\n')
    head = [l for l in ref if l.startswith(';') and '@launch' not in l]
    e = Em()
    for l in head: e.raw(l)
    e.raw('; @launch kernel=%s grid=(256,1,1) block=(256,1,1) lds=%d' % (K1, LDS_BYTES))
    e.raw('; @launch kernel=%s grid=(1280,1,1) block=(256,1,1) lds=0' % K2)
    e.raw('.amdgcn_target "amdgcn-amd-amdhsa--gfx950"'); e.raw('.text')
    for n, g in ((K1, gen_k1), (K2, gen_k2)):
        e.raw('.globl %s' % n); e.raw('.p2align 8'); e.raw('.type %s,@function' % n)
        g(e)
    e.raw('.section .rodata,"a"'); e.raw('.p2align 6'); e.raw(kd(K1, 512, 256)); e.raw('.p2align 6'); e.raw(kd(K2, 48, 48, 32))
    open(sys.argv[1], 'w').write(e.text())
    print('pads', e.npad, 'lines', len(e.out))
main()
```

```python
import re

def R(kind, lo, n=1):
    return [(kind, lo + i) for i in range(n)]

def parse_regs(tok):
    tok = tok.strip()
    tok = tok.lstrip('-').strip('|')
    m = re.fullmatch(r'([vas])\[(\d+):(\d+)\]', tok)
    if m:
        return R(m.group(1), int(m.group(2)), int(m.group(3)) - int(m.group(2)) + 1)
    m = re.fullmatch(r'([vas])(\d+)', tok)
    if m:
        return [(m.group(1), int(m.group(2)))]
    if tok in ('vcc', 'm0', 'exec', 'scc'):
        return [(tok, 0)]
    return []

TRANS = ('v_exp_f32', 'v_rcp_f32', 'v_log_f32', 'v_rsq_f32', 'v_sqrt_f32')

class Ins:
    __slots__ = ('text', 'kind', 'rd', 'wr', 'srcc', 'tag', 'ws', 'data')
    def __init__(self, text, tag=None):
        self.text = text
        self.tag = tag
        op, _, rest = text.partition(' ')
        ops = [o.strip() for o in rest.split(',')] if rest else []
        if ops:
            ops[-1] = ops[-1].split(' ')[0]
        self.srcc = []
        self.data = []
        self.ws = 1
        if op.startswith('v_mfma'):
            self.kind = 'mfma'
            self.wr = parse_regs(ops[0]); self.rd = parse_regs(ops[1]) + parse_regs(ops[2])
            self.srcc = parse_regs(ops[3])
        elif op.startswith('v_cmp'):
            self.kind = 'valu'
            self.wr = parse_regs(ops[0]); self.rd = sum((parse_regs(o) for o in ops[1:]), [])
        elif op.startswith('v_permlane'):
            self.kind = 'perm'
            self.wr = parse_regs(ops[0]) + parse_regs(ops[1]); self.rd = list(self.wr)
        elif op.startswith('v_readfirstlane'):
            self.kind = 'rfl'
            self.wr = parse_regs(ops[0]); self.rd = parse_regs(ops[1])
        elif op.startswith('v_'):
            self.kind = 'trans' if op in TRANS else 'valu'
            self.wr = parse_regs(ops[0]); self.rd = sum((parse_regs(o) for o in ops[1:]), [])
            if op.startswith('v_cndmask') and len(ops) == 3:
                self.rd += [('vcc', 0)]
        elif op.startswith('ds_read'):
            self.kind = 'lds'
            self.wr = parse_regs(ops[0]); self.rd = parse_regs(ops[1])
        elif op.startswith('ds_write'):
            self.kind = 'lds'
            self.wr = []; self.rd = parse_regs(ops[0]) + parse_regs(ops[1])
        elif op.startswith('buffer_atomic'):
            self.kind = 'vload'
            self.wr = parse_regs(ops[0]); self.rd = sum((parse_regs(o) for o in ops), [])
        elif op.startswith('buffer_load') and text.rstrip().endswith(' lds'):
            self.kind = 'dma'
            self.wr = []; self.rd = sum((parse_regs(o) for o in ops), []) + [('m0', 0)]
        elif op.startswith('buffer_load'):
            self.kind = 'vload'
            self.wr = parse_regs(ops[0]); self.rd = sum((parse_regs(o) for o in ops[1:]), [])
        elif op.startswith('buffer_store'):
            self.kind = 'vstore'
            self.wr = []; self.rd = sum((parse_regs(o) for o in ops), [])
            self.data = parse_regs(ops[0])
        elif op == 's_nop':
            self.kind = 'nop'; self.wr = []; self.rd = []; self.ws = int(ops[0]) + 1
        elif op.startswith('s_'):
            self.kind = 'salu'
            if op.startswith(('s_cmp', 's_cbranch', 's_branch', 's_waitcnt', 's_barrier', 's_endpgm', 's_setprio')):
                self.wr = []; self.rd = sum((parse_regs(o) for o in ops), [])
            else:
                self.wr = parse_regs(ops[0]); self.rd = sum((parse_regs(o) for o in ops[1:]), [])
        else:
            raise ValueError(text)

VALUISH = ('valu', 'trans', 'perm', 'rfl')

def need_ws(p, c):
    n = 0
    pw = set(p.wr)
    crd = set(c.rd); cw = set(c.wr); cc = set(c.srcc)
    if p.kind in VALUISH:
        if c.kind == 'mfma' and pw & (crd | cc): n = max(n, 2)
        if c.kind == 'perm' and pw & crd: n = max(n, 2)
        if c.kind == 'rfl' and pw & crd: n = max(n, 1)
        if p.kind == 'trans' and c.kind in VALUISH + ('vstore',) and pw & crd: n = max(n, 1)
        sg = {r for r in pw if r[0] in ('s', 'vcc')}
        if sg:
            if c.kind in ('dma', 'vload', 'vstore') and sg & crd: n = max(n, 5)
            if c.kind in VALUISH and sg & crd: n = max(n, 2)
    if p.kind == 'mfma':
        if c.kind == 'mfma':
            if pw & crd: n = max(n, 12)
            if pw & cc and p.wr != c.srcc: n = max(n, 10)
        elif c.kind in VALUISH + ('lds', 'dma', 'vload', 'vstore'):
            if pw & (crd | cw): n = max(n, 12)
        if c.kind in VALUISH and set(p.srcc) & cw: n = max(n, 7)
    if p.kind == 'salu' and ('m0', 0) in pw and c.kind == 'dma': n = max(n, 1)
    if p.kind == 'vstore' and len(p.data) >= 3 and set(p.data) & cw: n = max(n, 2)
    return n

class Em:
    def __init__(self):
        self.out = []
        self.hist = []
        self.lq = []
        self.vq = []
        self.npad = 0
    def raw(self, s):
        self.out.append(s)
    def label(self, name):
        self.out.append(name + ':')
    def comment(self, s):
        self.out.append('    ; ' + s)
    def state(self):
        return (list(self.hist), list(self.lq), list(self.vq))
    def set_state(self, st):
        self.hist, self.lq, self.vq = list(st[0]), list(st[1]), list(st[2])
    def __call__(self, text, tag=None):
        c = Ins(text, tag)
        if c.kind == 'lds' and len(self.lq) >= 15:
            self('s_waitcnt lgkmcnt(11)'); self.lq = self.lq[-11:]
        d = 0; pad = 0
        for p in reversed(self.hist):
            if d >= 12: break
            n = need_ws(p, c)
            if n > d: pad = max(pad, n - d)
            d += p.ws
        if pad:
            self.npad += pad
            nop = Ins('s_nop %d' % (pad - 1))
            self.out.append('    ' + nop.text); self.hist.append(nop)
        self.out.append('    ' + text)
        self.hist.append(c); self.hist = self.hist[-32:]
        if c.kind == 'lds': self.lq.append(tag)
        if c.kind in ('dma', 'vload', 'vstore'): self.vq.append(tag)
    def wait_l(self, tags):
        idx = max((i for i, t in enumerate(self.lq) if t in tags), default=-1)
        if idx < 0: return
        n = len(self.lq) - 1 - idx
        if n > 15: n = 15; idx = len(self.lq) - 16
        self('s_waitcnt lgkmcnt(%d)' % n)
        self.lq = self.lq[idx + 1:]
    def wait_v(self, tags):
        idx = max((i for i, t in enumerate(self.vq) if t in tags), default=-1)
        if idx < 0: return
        n = len(self.vq) - 1 - idx
        assert n <= 63, n
        self('s_waitcnt vmcnt(%d)' % n)
        self.vq = self.vq[idx + 1:]
    def text(self):
        return '\n'.join(self.out) + '\n'
```

```python
import sys, struct, math
sys.path.insert(0, 'gen')
from asmlib import Em

NAME = 'concat_heads__mha_block_cached__mha_block_cached__near_ridge'
K1 = NAME + '_kernel'
K2 = 'reduce_partials_kernel'

OPT = dict(kvsame=0, mf16=0, nomf=0, fuse=0, tmo=20000, nopoll=0, pre=0, prel=0, wpf=0, pin=0, pind=6, wnt=0, xnt=0, ant=0, gnt=0, stamp=0, nt=1, pf=6, nv=3, nodma=0, nobar=0, nost=0, stmod=0, stspan=120, stsame=0, wopf=0, pfnt=0, touch=0, rot=0, rt=0)
for a in sys.argv[2:]:
    k, v = a.split('='); OPT[k] = int(v)

PITCH = 2112; SLOT = 8 * PITCH; NSLOT = 9; BIAS = 4096
SCR = NSLOT * SLOT; LDS_BYTES = SCR + 4096
PF = OPT['pf']; NV = OPT['nv']
def fbits(x): return struct.unpack('<I', struct.pack('<f', x))[0]

vTS, vTV, vKE, vKO = 1, 4, 7, 10
vON, vOV, vOK, vOWO = 13, 15, 17, 19
vST, vL, vRL = 21, 22, 23
vE = [24, 25, 26, 27]; vTA, vTB, vT0, vT1 = 28, 29, 30, 31
QB = 32; OACC = 64; SB = [128, 144]; NEGM = 160; PB = [176, 184]; QACC = 192; GV = 128
OB = [('a', 160), ('a', 192), ('v', 192), ('v', 224)]
AF = 224
sK, sV, sN, sWO, sX, sWS = 4, 8, 12, 16, 20, 56
sWV, sKVH, sNO, sNH, sNT, sA, sB, sH, sTHR, sC = 24, 25, 26, 27, 28, 29, 30, 31, 32, 33

def vr(k, lo, n): return '%s[%d:%d]' % (k, lo, lo + n - 1)

class MF:
    def __init__(self, d, b, c, reads):
        self.d, self.b, self.c, self.reads = d, b, c, reads

def t_reads(base, slot, half, kb, T):
    off = (slot % 3) * SLOT + half * 1024 + kb * 4 * PITCH + T * 64
    a = 'v%d' % (base + slot // 3)
    return [('ds_read_b64_tr_b16', 0, 2, a, off), ('ds_read_b64_tr_b16', 2, 2, a, off + 512)]
def k_reads(slot, half, kk):
    off = (slot % 3) * SLOT + half * 1024 + (kk >> 1) * 64
    a = 'v%d' % ((vKO if kk & 1 else vKE) + slot // 3)
    return [('ds_read_b128', 0, 4, a, off)]

def qk(slot, half, t, c0):
    d = vr('v', SB[t & 1], 16)
    return [MF(d, vr('v', QB + 4 * kk, 4), (c0 if kk == 0 else d), k_reads(slot, half, kk)) for kk in range(8)]
def pv(slot, half, t):
    r = []
    for kb in range(2):
        for T in range(4):
            d = vr('v', OACC + 16 * T, 16)
            r.append(MF(d, vr('v', PB[t & 1] + 4 * kb, 4), ('0' if (t == 0 and kb == 0) else d),
                        t_reads(vTV, slot, half, kb, T)))
    return r

GACC = [('a', 0), ('a', 64), ('v', GV), ('v', OACC), ('v', GV)]
def mfmas(st, slot):
    k = st[0]
    if k in 'AW':
        i = st[1]
        order = [(kx, T) for kx in range(4) for T in range(4)]
        if i == 9: order = [(kx, T) for T in range(4) for kx in range(4)]
        r = []
        for kx, T in order:
            d = vr('v', QACC + 16 * T, 16)
            r.append(MF(d, vr('a', (4 * i + kx) * 4, 4), ('0' if (i == 0 and kx == 0) else d),
                        t_reads(vTS, slot, kx >> 1, kx & 1, T)))
        return r
    if k == 'G':
        c, ti = st[1], st[2]; ak, acc = GACC[c]
        ok, ob = OB[ti >> 1]
        order = [(kx, T) for kx in range(4) for T in range(4)]
        if c == 4 and ti == 7: order = [(kx, T) for T in range(4) for kx in range(4)]
        r = []
        for kx, T in order:
            d = vr(ak, acc + 16 * T, 16)
            r.append(MF(d, vr(ok, ob + ((ti & 1) * 4 + kx) * 4, 4), ('0' if (ti == 0 and kx == 0) else d),
                        t_reads(vTS, slot, kx >> 1, kx & 1, T)))
        return r
    i = st[1]
    if i == 0: return qk(slot, 0, 0, '0') + qk(slot, 1, 1, '0')
    if i == 15: return pv(slot, 0, 14) + pv(slot, 1, 15)
    return qk(slot, 1, i + 1, vr('v', NEGM, 16)) + pv(slot, 0, i - 1)

NT = ' nt' if OPT['nt'] else ''
vXO = 44
vXR = 48
def dma_tile(st, slot):
    ins = ['s_add_u32 m0, s%d, %d' % (sWV, slot * SLOT)]
    def four(srd0, v0, so0, srd1, v1, so1, mod=''):
        return ['buffer_load_dwordx4 v%d, %s, s%d offen%s lds' % (v0, vr('s', srd0, 4), so0, mod),
                'buffer_load_dwordx4 v%d, %s, s%d offen offset:1024%s lds' % (v1, vr('s', srd1, 4), so1, mod),
                'buffer_load_dwordx4 v%d, %s, s%d offen offset:%d%s lds' % (v0 + 1, vr('s', srd0, 4), so0, PITCH, mod),
                'buffer_load_dwordx4 v%d, %s, s%d offen offset:%d%s lds' % (v1 + 1, vr('s', srd1, 4), so1, PITCH + 1024, mod)]
    k = st[0]
    if k == 'G':
        o = st[2] * 81920 + st[1] * 256
        ins += ['s_mov_b32 s%d, %d' % (sA, o), 's_mov_b32 s%d, %d' % (sB, o + 40960 - 1024)]
        return ins, four(sN, vON, sA, sN, vON, sB, ' nt' * OPT['gnt']), []
    if k == 'A':
        o = st[1] * 64 * 8192
        ins += ['s_mov_b32 s%d, %d' % (sA, o), 's_mov_b32 s%d, %d' % (sB, o + 32 * 8192 - 1024)]
        return ins, four(sN, vON, sA, sN, vON, sB, ' nt' * OPT['ant']), []
    if k == 'W':
        ins += ['s_add_u32 s%d, s%d, s%d' % (sB, sNO, sNH)]
        return ins, four(sN, vON, sNO, sN, vON, sB, ' nt' * OPT['wnt']), ['s_add_u32 s%d, s%d, s%d' % (sNO, sNO, sNT)]
    if k == 'x':
        ins += ['s_mov_b32 s%d, %d' % (sA, st[1] * 128)]
        return ins, four(sX, vXO, sA, sX, vXO + 2, sA, ' nt' * OPT['xnt']), []
    if k == 'P':
        return ins, ['buffer_load_dwordx4 v%d, %s, s92 offen offset:%d lds' % (vST, vr('s', sWO, 4), 1024 * j) for j in range(4)], ['s_add_u32 s92, s92, 3072']
    t = st[1]; ho = st[2] * 131072
    h0 = (sK, vOK, 0) if t == 0 else (sV, vOV, t - 1)
    h1 = (sV, vOV, 15) if t == 15 else (sK, vOK, t + 1)
    ins += ['s_add_u32 s%d, s%d, %d' % (sA, sKVH, ho + h0[2] * 8192), 's_add_u32 s%d, s%d, %d' % (sB, sKVH, ho + h1[2] * 8192 - 1024)]
    return ins, four(h0[0], h0[1], sA, h1[0], h1[1], sB, NT), []

def dma_items(st, slot):
    pre, four, post = dma_tile(st, slot)
    it = [[('DMA', f, slot)] for f in four]
    it[0] = pre + it[0]; it[3] = it[3] + post
    return it

def x_reads(i, slot):
    return [('LDS', 'ds_read_b128 %s, v%d offset:%d' % (vr('a', (4 * i + kx) * 4, 4), vXR + (kx & 1) + 2 * (slot // 3), (slot % 3) * SLOT + (kx >> 1) * 64), 'xr%d' % i)
            for kx in range(4)]

def emit_reads(e, m, gi):
    f = AF + 4 * (gi % 8)
    for op, o, n, a, off in m.reads:
        e('%s %s, %s offset:%d' % (op, vr('a', f + o, n), a, off), tag=gi % 16)

def softmax_pairs(t):
    S = SB[t & 1]; P = PB[t & 1]; g = []
    for p in range(8):
        ea, eb = vE[(p & 1) * 2], vE[(p & 1) * 2 + 1]
        ex = ['v_exp_f32 v%d, v%d' % (ea, S + 2 * p), 'v_exp_f32 v%d, v%d' % (eb, S + 2 * p + 1)]
        if p == 0:
            rest = ['v_cvt_pk_bf16_f32 v%d, v%d, v%d' % (P + p, ea, eb), 'v_add_f32 v%d, v%d, v%d' % (vTA, ea, eb)]
        elif p == 1:
            rest = ['v_cvt_pk_bf16_f32 v%d, v%d, v%d' % (P + p, ea, eb), 'v_add_f32 v%d, v%d, v%d' % (vTB, ea, eb)]
        else:
            rest = ['v_add_f32 v%d, v%d, v%d' % (vTA, vTA, ea), 'v_cvt_pk_bf16_f32 v%d, v%d, v%d' % (P + p, ea, eb),
                    'v_add_f32 v%d, v%d, v%d' % (vTB, vTB, eb)]
        g.append((ex, rest))
    return g

def rowmax(S, dst):
    r = ['v_max3_f32 v%d, v%d, v%d, v%d' % (dst, S, S + 1, S + 2), 'v_max3_f32 v%d, v%d, v%d, v%d' % (vT1, S + 3, S + 4, S + 5)]
    for i in range(6, 16, 4):
        r.append('v_max3_f32 v%d, v%d, v%d, v%d' % (dst, dst, S + i, S + i + 1))
        if i + 2 < 16: r.append('v_max3_f32 v%d, v%d, v%d, v%d' % (vT1, vT1, S + i + 2, S + i + 3))
    r += ['v_max_f32 v%d, v%d, v%d' % (dst, dst, vT1), 'v_mov_b32 v%d, v%d' % (vT1, dst),
          'v_permlane32_swap_b32 v%d, v%d' % (dst, vT1), 'v_max_f32 v%d, v%d, v%d' % (dst, dst, vT1)]
    return r

RARE = []
def check(t, rs):
    return ['v_add_f32 v%d, v%d, v%d' % (vTA, vTA, vTB), 'v_cmp_nge_f32 vcc, s%d, v%d' % (sTHR, vTA),
            ('RARE', t, rs), 'v_add_f32 v%d, v%d, v%d' % (vL, vL, vTA)]

def emit_rare(e, t, rs):
    S = SB[t & 1]; S2 = SB[(t + 1) & 1]
    e.label('L_rare%s%d' % (rs, t))
    e.hist = []
    e('s_nop 15')
    for s in rowmax(S, vT0): e(s)
    e('v_max_f32 v%d, 0, v%d' % (vT0, vT0))
    e('v_sub_f32 v%d, 0, v%d' % (vT1, vT0))
    e('v_exp_f32 v%d, v%d' % (vT1, vT1))
    for i in range(16): e('v_sub_f32 v%d, v%d, v%d' % (S + i, S + i, vT0))
    if t < 15:
        for i in range(16): e('v_sub_f32 v%d, v%d, v%d' % (S2 + i, S2 + i, vT0))
        for i in range(16): e('v_sub_f32 v%d, v%d, v%d' % (NEGM + i, NEGM + i, vT0))
    for i in range(64): e('v_mul_f32 v%d, v%d, v%d' % (OACC + i, OACC + i, vT1))
    e('v_mul_f32 v%d, v%d, v%d' % (vL, vL, vT1))
    for ex, rest in softmax_pairs(t):
        for s in ex + rest: e(s)
    e('v_add_f32 v%d, v%d, v%d' % (vTA, vTA, vTB))
    e('s_nop 3')
    e('s_branch L_back%s%d' % (rs, t))

def epilogue(h):
    ok, ob = OB[h]; r = []
    for T in range(4):
        for p in range(8):
            a = OACC + 16 * T + 2 * p
            r += ['v_mul_f32 v%d, v%d, v%d' % (a, a, vRL), 'v_mul_f32 v%d, v%d, v%d' % (a + 1, a + 1, vRL)]
            if ok == 'v':
                r.append('v_cvt_pk_bf16_f32 v%d, v%d, v%d' % (ob + 8 * T + p, a, a + 1))
            else:
                r += ['v_cvt_pk_bf16_f32 v%d, v%d, v%d' % (a, a, a + 1), 'v_accvgpr_write_b32 a%d, v%d' % (ob + 8 * T + p, a)]
    return r

def qconv(T):
    r = []
    for p in range(8):
        a = QACC + 16 * T + 2 * p
        r += ['v_mul_f32 v%d, s%d, v%d' % (a, sC, a), 'v_mul_f32 v%d, s%d, v%d' % (a + 1, sC, a + 1),
              'v_cvt_pk_bf16_f32 v%d, v%d, v%d' % (QB + 8 * T + p, a, a + 1)]
    return r

def gout(c):
    ak, acc = GACC[c]; r = []
    for T in range(4):
        if T % 2 == 0: r.append('s_mov_b32 s34, %d' % ((c * 4 + T) * 2048))
        for j in range(2):
            for p in range(4):
                a = acc + 16 * T + 8 * j + 2 * p
                d = QB + 8 * T + 4 * j + p
                if ak == 'a':
                    r += ['v_accvgpr_read_b32 v%d, a%d' % (d, a), 'v_accvgpr_read_b32 v%d, a%d' % (vE[p], a + 1),
                          'v_cvt_pk_bf16_f32 v%d, v%d, v%d' % (d, d, vE[p])]
                else:
                    r.append('v_cvt_pk_bf16_f32 v%d, v%d, v%d' % (d, a, a + 1))
            r.append(('VM', 'buffer_store_dwordx4 %s, v%d, %s, s34 offen offset:%d%s' %
                     (vr('v', QB + 8 * T + 4 * j, 4), vST, vr('s', sWS, 4), ((T & 1) * 2 + j) * 1024,
                      ['', ' nt', ' sc1', ' sc0 sc1', ' sc0 sc1 nt'][2 if OPT['fuse'] else OPT['stmod']]), 'st%d' % c))
    return r

sOUT, sWA, sDBG, sFLG = 80, 84, 96, 4
sRB, sOB, sFB, sTAG = 78, 79, 90, 100
sPEND, sMASK, sDBO, sTMP = 20, 21, 91, 23
vSEL, vLB, vOBS, vLM, vOM, vPO, vPD, vFD, vCNT = 4, 8, 9, 10, 11, 12, 16, 18, 20
FLAG0 = 0x3000000
def one_lane(ins): return ['s_mov_b64 exec, 1'] + ins + ['s_mov_b64 exec, -1']
def red_setup():
    t0, t1 = vPD, vPD + 1
    r = [['v_and_b32 v%d, 7, v0' % vPO, 'v_lshrrev_b32 v%d, 3, v0' % t0],
         ['v_lshlrev_b32 v%d, 4, v%d' % (vLB, vPO), 'v_lshl_add_u32 v%d, v%d, 9, v%d' % (vLB, t0, vLB)],
         ['v_mul_u32_u24 v%d, 2560, v%d' % (vOBS, vPO), 'v_lshl_add_u32 v%d, v%d, 4, v%d' % (vOBS, t0, vOBS)],
         ['v_lshlrev_b32 v%d, 3, v%d' % (vPO, vPO)],
         ['v_bfe_u32 v%d, v0, 2, 1' % t0, 'v_lshrrev_b32 v%d, 5, v0' % t1, 'v_xor_b32 v%d, v%d, v%d' % (t0, t0, t1)],
         ['v_bfe_u32 v%d, v0, 4, 1' % t1, 'v_or_b32 v%d, v%d, v%d' % (t0, t0, t1)],
         ['v_bfe_u32 v%d, v0, 1, 1' % t1, 'v_lshl_add_u32 v%d, v%d, 2, v%d' % (t0, t0, t1)],
         ['v_bfe_u32 v%d, v0, 3, 1' % t1, 'v_lshl_add_u32 v%d, v%d, 1, v%d' % (t0, t1, t0)],
         ['v_and_b32 v%d, 1, v0' % t1, 'v_lshlrev_b32 v%d, 4, v%d' % (t1, t1)],
         ['v_mov_b32 v%d, 0x3f80' % vCNT, 'v_lshlrev_b32 v%d, v%d, v%d' % (t1, t1, vCNT)]]
    for k in range(4):
        r.append(['v_cmp_eq_u32 vcc, %d, v%d' % (k, t0), 'v_cndmask_b32 v%d, 0, v%d, vcc' % (vSEL + k, t1)])
    r.append(['v_mov_b32 v%d, s%d' % (vFD, sTAG), 'v_mov_b32 v%d, s%d' % (vFD + 1, sTAG + 1), 'v_mov_b32 v%d, 1' % vCNT])
    r.append(['s_add_u32 s%d, s%d, s94' % (sFLG, sWA), 's_addc_u32 s%d, s%d, 0' % (sFLG + 1, sWA + 1), 's_cmp_eq_u32 s%d, 0' % sWV,
              's_cselect_b32 s%d, 512, 0' % (sFLG + 2), 's_mov_b32 s%d, 0x18' % sPEND])
    return r
def flag(sy):
    return one_lane([('VM', 'buffer_store_dwordx2 %s, off, %s, 0 offset:%d sc1' % (vr('v', vFD, 2), vr('s', sFLG, 4), sy * 128), 'fl')])
def poll(sy): return [('VM', 'buffer_load_dwordx2 %s, v%d, %s, s%d offen offset:%d sc1' % (vr('v', vPD, 2), vPO, vr('s', sWA, 4), sFB, sy * 128), 'poll')]
def pcmp():
    return ['v_cmp_eq_u64 vcc, %s, %s' % (vr('s', sTAG, 2), vr('v', vPD, 2)), 's_cmp_eq_u64 vcc, %s' % ('0x1234' if OPT['nopoll'] else '-1')]
def pcheck(bits):
    return [('WAITV', 'poll')] + pcmp() + ['s_cselect_b32 s%d, 0, 0x80000000' % sMASK, 's_cselect_b32 s%d, 0, %d' % (sTMP, bits),
            's_or_b32 s%d, s%d, s%d' % (sPEND, sPEND, sTMP), 'v_or_b32 v%d, s%d, v%d' % (vLM, sMASK, vLB), 'v_or_b32 v%d, s%d, v%d' % (vOM, sMASK, vOBS)]
def rloads(c, a0, vo, sb=sRB):
    return [['s_add_u32 s%d, s%d, %d' % (sTMP, sb, c * 8192 + p * 163840),
             ('VM', 'buffer_load_dwordx4 %s, v%d, %s, s%d offen sc1' % (vr('a', a0 + 4 * p, 4), vo, vr('s', sWA, 4), sTMP), 'rl%d_%d' % (c, p))] for p in range(8)]
def rsum(c, a0, d):
    D = vr('a', d, 16)
    return [[('WAITV', 'rl%d_%d' % (c, p)), 'v_mfma_f32_32x32x16_bf16 %s, %s, %s, %s' % (D, vr('v', vSEL, 4), vr('a', a0 + 4 * p, 4), D if p else '0')] for p in range(8)]
def rout(c, d, vo, sb=sOB):
    r = []
    for k in range(4):
        r += ['v_accvgpr_read_b32 v%d, a%d' % (24 + k, d + 2 * k), 'v_accvgpr_read_b32 v%d, a%d' % (28 + k, d + 2 * k + 1),
              'v_cvt_pk_bf16_f32 v%d, v%d, v%d' % (24 + k, 24 + k, 28 + k)]
    r.append(('VM', 'buffer_store_dwordx4 v[24:27], v%d, %s, s%d offen offset:%d' % (vo, vr('s', sOUT, 4), sb, c * 256), 'ro'))
    return r

def spread(gaps, items, g0, g1):
    n = g1 - g0
    for k, it in enumerate(items):
        gaps[g0 + k * n // len(items)].append(it)

def emit_item(e, it):
    if isinstance(it, tuple):
        if it[0] == 'RARE':
            e('s_cbranch_vccnz L_rare%s%d' % (it[2], it[1])); e.label('L_back%s%d' % (it[2], it[1])); RARE.append((it[1], it[2]))
        elif it[0] == 'DMA':
            if OPT['nodma']: e.vq.append(it[2])
            else: e(it[1], tag=it[2])
        elif it[0] == 'LDS': e(it[1], tag=it[2])
        elif it[0] == 'VM':
            if not (OPT['nost'] and it[2].startswith('st')): e(it[1], tag=it[2])
        elif it[0] == 'WAITV': e.wait_v({it[1]})
        elif it[0] == 'WAITL': e.wait_l({it[1]})
        elif it[0] == 'NEXT':
            e('s_add_u32 s%d, s%d, 2' % (sA, sH))
            e('s_lshl_b32 s%d, s%d, 8' % (sNO, sA))
            e('s_cmp_lg_u32 s%d, 2' % sH)
            e('s_cbranch_scc1 L_notlast'); mark = len(e.out)
            e('s_mov_b32 s%d, s%d' % (sN, sWO)); e('s_mov_b32 s%d, s%d' % (sN + 1, sWO + 1))
            e('s_mov_b32 s%d, 0' % sNO); e('s_mov_b32 s%d, %d' % (sNH, 40960 - 1024)); e('s_mov_b32 s%d, %d' % (sNT, 81920))
            e('v_mov_b32 v%d, v%d' % (vON, vOWO)); e('v_mov_b32 v%d, v%d' % (vON + 1, vOWO + 1))
            for x in e.hist[-(len(e.out) - mark):]: x.ws = 0
            e.label('L_notlast')
        elif it[0] == 'STAMP':
            stamp(e, it[1])
    elif it == 's_barrier' and OPT['nobar']: pass
    elif it.startswith('buffer_store') and OPT['nost']: pass
    else:
        e(it, tag='st' if it.startswith('buffer_store') else None)

def stamp(e, idx):
    if not OPT['stamp']: return
    e('s_memtime s[%d:%d]' % (60 + 2 * idx, 61 + 2 * idx))
    r = 88 if idx == 0 else 36 + 2 * idx
    e('s_memrealtime s[%d:%d]' % (r, r + 1))

def flat(groups): return [x for g in groups for x in g]

class Seg:
    def __init__(self, L, n, slot0, rs, auto_dma=True):
        self.L, self.n, self.slot0, self.rs = L, n, slot0, rs
        self.steps = [i for i in range(n) if L[i][0] != 'P']
        self.g = {}; self.prebar = {}
        self.auto = auto_dma
    def slot(self, i): return (self.slot0 + i) % NSLOT
    def nxt(self, i):
        j = i + 1
        if j < len(self.L) and self.L[j][0] == 'P': j += 1
        return j if j < len(self.L) else None
    def lin(self, i, g): return self.steps.index(i) * 16 + g
    def add(self, lin, items, front=False):
        k = (self.steps[lin // 16], lin % 16)
        self.g[k] = (list(items) + self.g.get(k, [])) if front else (self.g.get(k, []) + list(items))
    def put(self, items, l0, l1):
        for k, it in enumerate(items): self.add(l0 + k * (l1 - l0) // len(items), it if isinstance(it, list) else [it])
    def find(self, st): return [i for i in self.steps if self.L[i][:len(st)] == st][0]

def plan_attn(sg, qc):
    isx = lambda si: sg.L[sg.steps[si]][0] == 'X'
    for t in range(16):
        i = sg.find(('X', t)); si = sg.steps.index(i); l = si * 16
        if t == 0:
            assert not isx(si + 1)
            it = rowmax(SB[0], vT0) + ['v_sub_f32 v%d, 0, v%d' % (vT0, vT0)]
            it += ['v_add_f32 v%d, v%d, v%d' % (SB[0] + j, SB[0] + j, vT0) for j in range(16)]
            for ex, rest in softmax_pairs(0): it += ex + rest
            it += ['v_add_f32 v%d, v%d, v%d' % (vL, vTA, vTB)]
            it += ['v_mov_b32 v%d, v%d' % (NEGM + j, vT0) for j in range(16)]
            it += ['v_add_f32 v%d, v%d, v%d' % (SB[1] + j, SB[1] + j, vT0) for j in range(16)]
            sg.put(it, l + 10, l + 26)
            continue
        l0 = l - 8 if (not isx(si - 1) and t != 1) else l
        l1 = l + 24 if (t < 14 and not isx(si + 1)) else l + 16
        if t == 15: l0, l1 = l - 16, l + 8
        gr = []
        for ex, rest in softmax_pairs(t): gr += [ex, rest]
        if t == 15 and qc:
            sg.put(gr[:6], l0, l0 + 6); sg.put(gr[6:], l, l + 8)
        else: sg.put(gr, l0, l1)
        sg.add(l1 - 1, check(t, sg.rs))
        if t == 15:
            sg.add(l + 9, ['v_mov_b32 v%d, v%d' % (vT1, vL)])
            sg.add(l + 10, ['v_permlane32_swap_b32 v%d, v%d' % (vL, vT1)])
            sg.add(l + 11, ['v_add_f32 v%d, v%d, v%d' % (vL, vL, vT1)])
            sg.add(l + 12, ['v_rcp_f32 v%d, v%d' % (vRL, vL)])
            if qc:
                sg.put(qconv(0), l - 10, l - 5); sg.put(qconv(1), l - 5, l); sg.put(qconv(2) + qconv(3), l + 8, l + 16)

def plan_epi(sg, h, l0):
    ep = epilogue(h); n = len(ep) * 3 // 4
    sg.put(ep[:n], l0 + 1, l0 + 26); sg.put(ep[n:], l0 + 42, l0 + 48)

FAKE = {}
def emit_steps(e, sg, s0, s1):
    L = sg.L
    for i in sg.steps[s0:s1]:
        st = L[i]
        e.comment('---- step %d : %s' % (i, st))
        ms = mfmas(st, sg.slot(i))
        ni = sg.nxt(i)
        nms = mfmas(L[ni], sg.slot(ni)) if ni is not None else []
        gaps = [list(sg.g.get((i, g), [])) for g in range(16)]
        tiles = []
        if sg.auto:
            if i > 0 and L[i - 1][0] == 'P' and i + 7 < len(L): tiles.append(i + 7)
            if i + 8 < len(L) and (L[i + 8][0] != 'P' or OPT['wpf']): tiles.append(i + 8)
        if ni is not None: gaps[8] = sg.prebar.get(i, []) + [('WAITV', sg.slot(ni)), 's_barrier'] + gaps[8]
        d = flat([dma_items(L[tp], sg.slot(tp)) for tp in tiles])
        slots = [9, 11, 13, 15] if len(tiles) == 1 else [9, 10, 11, 12, 13, 14, 15, 15]
        if len(tiles) == 2: d = d[:6] + [d[6] + d[7]]
        for q, grp in enumerate(d): gaps[slots[q]] = grp + gaps[slots[q]]
        for g, m in enumerate(ms):
            if g % 2 == 0: e.wait_l({g, g + 1})
            if OPT['mf16']:
                import re
                dk, dlo = re.match(r'([va])\[(\d+)', m.d).groups(); dlo = int(dlo)
                cnt = FAKE.setdefault(m.d, [0, None])
                if m.c != m.d: cnt[0] = 0; cnt[1] = m.c
                par = cnt[0] & 1
                def sub(q):
                    d = vr(dk, dlo + 8 * par + 4 * q, 4)
                    c = d
                    if cnt[0] < 2 and cnt[1] is not None: c = '0' if cnt[1] == '0' else vr('v', NEGM, 4)
                    bk, blo = re.match(r'([va])\[(\d+)', m.b).groups()
                    return 'v_mfma_f32_16x16x32_bf16 %s, %s, %s, %s' % (d, vr('a', AF + 4 * (g % 8), 4), vr(bk, int(blo) ^ (4 * q), 4), c)
                e(sub(0)); m2 = sub(1); cnt[0] += 1
                its = gaps[g]; k = 0
                plain = all(isinstance(x, str) and x.startswith('v_') and 'vcc' not in x for x in its)
                k = len(its) // 2 if plain else 0
                gaps[g] = its[:k] + [m2] + its[k:]
            elif OPT['nomf'] == 1: pass
            elif OPT['nomf'] == 2: e('s_nop 7'); e('s_nop 7')
            else: e('v_mfma_f32_32x32x16_bf16 %s, %s, %s, %s' % (m.d, vr('a', AF + 4 * (g % 8), 4), m.b, m.c))
            j = g + PF
            if j < 16: emit_reads(e, ms[j], j)
            elif ni is not None:
                assert g >= 9
                emit_reads(e, nms[j - 16], j)
            for it in gaps[g]: emit_item(e, it)

def parse_order(txt, other, ho=0):
    r = []; o = iter(other); t = 0
    for ch in txt:
        if ch == 'X': r.append(('X', t, ho)); t += 1
        elif ch == 'P': r.append(('P',))
        else: r.append(next(o))
    return r
BODY = 'WXWXXWXXWXPWXXWXXWXWXXWXXWX'
BODY3 = 'GXGXXGXXGXGXGXXGXGXGXXGXGXGX'
assert len(BODY) == 27 and BODY.count('X') == 16 and BODY3.count('X') == 16 and BODY3.count('G') == 12
assert BODY[:8].replace('W', 'G') == BODY3[:8]

def srd(e, r, nbytes):
    e('s_mov_b32 s%d, %d' % (r + 2, nbytes)); e('s_mov_b32 s%d, 0x00020000' % (r + 3))

def unit_bases(e, sp, sw, rb, ob, t):
    e('s_lshr_b32 s%d, s2, 4' % ob)
    e('s_lshl_b32 s%d, s3, 4' % rb); e('s_add_u32 s%d, s%d, s%d' % (rb, rb, ob)); e('s_mul_i32 s%d, s%d, %d' % (rb, rb, 8 * 163840))
    e('s_mul_i32 s%d, s%d, %d' % (ob, ob, 128 * 2560))
    e('s_mul_i32 s%d, s3, 1280' % t); e('s_add_u32 s%d, s%d, s%d' % (ob, ob, t))
    e('s_lshr_b32 s%d, s%d, 1' % (t, sp)); e('s_mul_i32 s%d, s%d, 40960' % (t, t)); e('s_add_u32 s%d, s%d, s%d' % (rb, rb, t))
    e('s_lshl_b32 s%d, s%d, 1' % (t, t)); e('s_add_u32 s%d, s%d, s%d' % (ob, ob, t))
    e('s_and_b32 s%d, s%d, 1' % (t, sp)); e('s_lshl_b32 s%d, s%d, 7' % (t, t)); e('s_add_u32 s%d, s%d, s%d' % (ob, ob, t))
    e('s_lshl_b32 s%d, s%d, 5' % (t, t)); e('s_add_u32 s%d, s%d, s%d' % (rb, rb, t))
    e('s_lshl_b32 s%d, s%d, 7' % (t, sw)); e('s_add_u32 s%d, s%d, s%d' % (rb, rb, t))
    e('s_mul_i32 s%d, s%d, %d' % (t, sw, 8 * 2560)); e('s_add_u32 s%d, s%d, s%d' % (ob, ob, t))

def gen_tail(e):
    e('s_waitcnt vmcnt(0)'); e.vq = []
    e('s_barrier')
    for it in flag(3): emit_item(e, it)
    e('s_memrealtime s[8:9]')
    add = one_lane([('VM', 'buffer_atomic_add v%d, off, %s, 0 offset:4 sc0' % (vCNT, vr('s', sDBG, 4)), 'add')])
    for c in range(5):
        if c < 4:
            e('s_bitcmp1_b32 s%d, %d' % (sPEND, c)); e('s_cbranch_scc0 L_tn%d' % c)
        e.label('L_tp%d' % c)
        for it in poll(max(c - 1, 0)): emit_item(e, it)
        e('s_memrealtime s[10:11]')
        e('s_waitcnt vmcnt(0)'); e.vq = []
        for it in pcmp(): e(it)
        e('s_cbranch_scc1 L_tg%d' % c)
        e('s_waitcnt lgkmcnt(0)')
        e('s_sub_u32 s10, s10, s8'); e('s_cmp_lt_u32 s10, %d' % OPT['tmo']); e('s_cbranch_scc1 L_tp%d' % c)
        e('s_branch L_slow')
        e.label('L_tg%d' % c)
        for it in flat(rloads(c, 0, vLB)): emit_item(e, it)
        if c == 4:
            for it in add: emit_item(e, it)
        for it in flat(rsum(c, 0, 128)) + rout(c, 128, vOBS): emit_item(e, it)
        if c < 4:
            e.label('L_tn%d' % c); e.hist = []; e('s_nop 1')
    e.wait_v({'add'}); e('s_waitcnt lgkmcnt(0)')
    e('v_readfirstlane_b32 s10, v%d' % vCNT)
    e('s_and_b32 s11, s10, 15'); e('s_cmp_lg_u32 s11, 7'); e('s_cbranch_scc1 L_done')
    e('s_lshr_b32 s10, s10, 8'); e('s_branch L_rescue')
    e.label('L_slow'); e.hist = []
    for it in add: emit_item(e, it)
    e('s_waitcnt vmcnt(0)')
    e('v_readfirstlane_b32 s10, v%d' % vCNT)
    e('s_and_b32 s11, s10, 15'); e('s_lshr_b32 s10, s10, 8'); e('s_cmp_eq_u32 s11, 7'); e('s_cselect_b32 s10, s10, 0')
    e('s_lshl_b32 s11, 1, s%d' % sDBO); e('s_or_b32 s10, s10, s11'); e('s_lshl_b32 s11, s11, 8')
    e('v_mov_b32 v%d, s11' % vCNT); e('s_mov_b32 s%d, 8' % (sDBG + 2))
    for it in one_lane([('VM', 'buffer_atomic_or v%d, off, %s, 0 offset:4 sc0' % (vCNT, vr('s', sDBG, 4)), 'add')]): emit_item(e, it)
    e('s_waitcnt vmcnt(0)'); e.vq = []
    e('v_readfirstlane_b32 s11, v%d' % vCNT)
    e('s_and_b32 s11, s11, 15'); e('s_cmp_lg_u32 s11, 8'); e('s_cbranch_scc1 L_done')
    e.label('L_rescue'); e.hist = []
    e('s_and_b32 s10, s10, 255'); e('s_cmp_eq_u32 s10, 0'); e('s_cbranch_scc1 L_done')
    e('s_ff1_i32_b32 s11, s10'); e('s_bitset0_b32 s10, s11'); e('s_mov_b32 s8, 0')
    e.label('L_rw'); e.hist = []
    unit_bases(e, 11, 8, sRB, sOB, 9)
    for c in range(5):
        for it in flat(rloads(c, 0, vLB)) + flat(rsum(c, 0, 128)) + rout(c, 128, vOBS): emit_item(e, it)
    e('s_waitcnt vmcnt(0)'); e.vq = []
    e('s_add_u32 s8, s8, 1'); e('s_cmp_lt_u32 s8, 4'); e('s_cbranch_scc1 L_rw')
    e('s_branch L_rescue')
    e.label('L_done'); e.hist = []

def gen_k1(e):
    e.label(K1)
    e('s_cmp_ge_u32 s2, 256'); e('s_cbranch_scc1 L_end')
    e('s_load_dwordx16 s[36:51], s[0:1], 0')
    e('s_load_dwordx4 s[52:55], s[0:1], 64')
    e('s_load_dwordx2 s[56:57], s[0:1], 96')
    if OPT['fuse']:
        e('s_load_dwordx2 %s, s[0:1], 80' % vr('s', sOUT, 2)); e('s_load_dwordx2 %s, s[0:1], 88' % vr('s', sDBG, 2))
        e('s_load_dwordx2 %s, s[0:1], 96' % vr('s', sWA, 2)); e('s_memrealtime %s' % vr('s', sTAG, 2))
    if OPT['stamp']:
        stamp(e, 0)
    L = 32
    e('v_lshrrev_b32 v%d, 6, v0' % L)
    e('v_and_b32 v0, 63, v0')
    e('v_readfirstlane_b32 s35, v%d' % L)
    lane = 0
    r_, c_, hf, g1, s_, pos_, t0, t1, cs, ss = range(33, 43)
    e('v_bfe_u32 v%d, v0, 2, 2' % r_); e('v_and_b32 v%d, 3, v0' % c_); e('v_lshrrev_b32 v%d, 5, v0' % hf)
    e('v_bfe_u32 v%d, v0, 4, 1' % g1); e('v_lshrrev_b32 v%d, 4, v0' % s_); e('v_and_b32 v%d, 15, v0' % pos_)
    def swap2(dst, src):
        e('v_and_b32 v%d, 1, v%d' % (t0, src)); e('v_lshlrev_b32 v%d, 1, v%d' % (t0, t0))
        e('v_lshrrev_b32 v%d, 1, v%d' % (t1, src)); e('v_or_b32 v%d, v%d, v%d' % (dst, t0, t1))
    swap2(cs, c_); swap2(ss, s_)
    e('v_mul_u32_u24 v%d, %d, v%d' % (t0, PITCH, r_))
    e('v_lshl_add_u32 v%d, v%d, 8, v%d' % (t0, hf, t0))
    e('v_lshl_add_u32 v%d, v%d, 5, v%d' % (t0, g1, t0))
    e('v_lshl_add_u32 v%d, v%d, 3, v%d' % (vTV, c_, t0))
    e('v_lshl_add_u32 v%d, v%d, 3, v%d' % (vTS, cs, t0))
    e('v_and_b32 v%d, 7, v0' % t0); e('v_mul_u32_u24 v%d, %d, v%d' % (t0, PITCH, t0))
    e('v_bfe_u32 v%d, v0, 3, 2' % t1)
    e('v_lshl_add_u32 v%d, v%d, 8, v%d' % (t0, t1, t0))
    e('v_xor_b32 v%d, v%d, v%d' % (t1, t1, hf))
    e('v_lshl_add_u32 v%d, v%d, 4, v%d' % (vKE, t1, t0))
    e('v_xor_b32 v%d, 2, v%d' % (t1, t1))
    e('v_lshl_add_u32 v%d, v%d, 4, v%d' % (vKO, t1, t0))
    for b in (vTS, vTV, vKE, vKO):
        e('v_add_u32 v%d, %d, v%d' % (b + 1, 3 * SLOT, b)); e('v_add_u32 v%d, %d, v%d' % (b + 2, 6 * SLOT, b))
    e('s_lshr_b32 s58, s35, 1'); e('s_lshl_b32 s58, s58, 4'); e('s_and_b32 s59, s35, 1'); e('s_lshl_b32 s59, s59, 1')
    e('s_add_u32 s58, s58, s59')
    e('v_lshlrev_b32 v%d, 4, v%d' % (pos_, pos_)); e('v_add_u32 v%d, %d, v%d' % (t1, BIAS, pos_))
    e('v_lshl_add_u32 v%d, v%d, 2, s58' % (t0, s_))
    e('v_lshl_add_u32 v%d, v%d, 8, v%d' % (vOV, t0, t1)); e('v_add_u32 v%d, %d, v%d' % (vOV + 1, (256 - PITCH) & 0xffffffff, vOV))
    e('v_mul_u32_u24 v%d, 1280, v%d' % (vOWO, t0)); e('v_add_u32 v%d, v%d, v%d' % (vOWO, vOWO, t1))
    e('v_add_u32 v%d, %d, v%d' % (vOWO + 1, (1280 - PITCH) & 0xffffffff, vOWO))
    e('v_lshl_add_u32 v%d, v%d, 2, s58' % (t0, ss))
    e('v_lshl_add_u32 v%d, v%d, 13, v%d' % (vON, t0, t1)); e('v_add_u32 v%d, %d, v%d' % (vON + 1, 8192 - PITCH, vON))
    e('s_lshl_b32 s59, s35, 1')
    e('v_lshl_add_u32 v%d, v%d, 3, s59' % (t0, s_))
    e('v_lshlrev_b32 v%d, 4, v%d' % (t1, s_)); e('v_xor_b32 v%d, v%d, v%d' % (t1, t1, pos_)); e('v_add_u32 v%d, %d, v%d' % (t1, BIAS, t1))
    e('v_lshl_add_u32 v%d, v%d, 8, v%d' % (vOK, t0, t1)); e('v_add_u32 v%d, %d, v%d' % (vOK + 1, (256 - PITCH) & 0xffffffff, vOK))
    e('s_mul_i32 s59, s35, 40960')
    e('v_lshl_add_u32 v%d, v0, 4, s59' % vST)
    e('v_lshrrev_b32 v%d, 3, v0' % t0); e('v_mul_u32_u24 v%d, 1280, v%d' % (t0, t0))
    e('v_and_b32 v%d, 7, v0' % t1); e('v_xor_b32 v%d, v%d, v%d' % (t1, t1, s_))
    e('v_lshl_add_u32 v%d, v%d, 4, v%d' % (t0, t1, t0)); e('v_add_u32 v%d, s59, v%d' % (vXO, t0))
    e('v_add_u32 v%d, %d, v%d' % (vXO + 2, 8 * 1280 - 1024, vXO)); e('v_add_u32 v%d, %d, v%d' % (vXO + 1, 16 * 1280 - PITCH, vXO))
    e('v_add_u32 v%d, %d, v%d' % (vXO + 3, 24 * 1280 - PITCH - 1024, vXO))
    e('s_mul_i32 s%d, s35, %d' % (sWV, 2 * PITCH))
    e('s_and_b32 s58, s2, 3'); e('s_lshl_b32 s58, s58, 1'); e('s_bfe_u32 s59, s2, 0x10003'); e('s_add_u32 s58, s58, s59')
    e('s_lshr_b32 s59, s2, 4')
    e('s_bfe_u32 s3, s2, 0x10002')
    e('s_waitcnt lgkmcnt(0)')
    e('s_cmp_eq_u32 s3, 0')
    e('s_cselect_b64 s[%d:%d], s[36:37], s[46:47]' % (sX, sX + 1))
    e('s_cselect_b64 s[%d:%d], s[38:39], s[48:49]' % (sK, sK + 1))
    e('s_cselect_b64 s[%d:%d], s[40:41], s[50:51]' % (sV, sV + 1))
    e('s_cselect_b64 s[%d:%d], s[42:43], s[52:53]' % (sN, sN + 1))
    e('s_cselect_b64 s[%d:%d], s[44:45], s[54:55]' % (sWO, sWO + 1))
    def addp(r, sreg):
        e('s_add_u32 s%d, s%d, s%d' % (r, r, sreg)); e('s_addc_u32 s%d, s%d, 0' % (r + 1, r + 1))
    def subb(r):
        e('s_sub_u32 s%d, s%d, %d' % (r, r, BIAS)); e('s_subb_u32 s%d, s%d, 0' % (r + 1, r + 1))
    e('s_mul_i32 s34, s59, 163840'); addp(sX, 34); srd(e, sX, 163840)
    e('s_lshl_b32 s34, s58, 10'); addp(sN, 34); subb(sN); srd(e, sN, 640 * 8192 + BIAS)
    XS = [2, 6, 3, 7, 4, 5, 6, 7, 8, 0]
    AS = lambda i: (8 + i) % 9
    def issue(st, slot):
        for it in flat(dma_items(st, slot)): emit_item(e, it)
    for k, i in (('x', 0), ('A', 0), ('x', 1), ('x', 2), ('A', 1), ('x', 3), ('x', 4), ('x', 5), ('A', 2)):
        issue((k, i), XS[i] if k == 'x' else AS(i))
    e('v_mul_u32_u24 v%d, %d, v%d' % (t0, PITCH, g1)); e('v_bfe_u32 v%d, v0, 3, 1' % t1); e('v_lshl_add_u32 v%d, v%d, 10, v%d' % (t0, t1, t0))
    e('v_and_b32 v%d, 7, v0' % t1); e('v_lshl_add_u32 v%d, v%d, 7, v%d' % (t0, t1, t0)); e('v_add_u32 v%d, s%d, v%d' % (t0, sWV, t0))
    e('v_bfe_u32 v%d, v0, 1, 2' % t1); e('v_xor_b32 v%d, v%d, v%d' % (t1, t1, hf))
    e('v_lshl_add_u32 v%d, v%d, 4, v%d' % (vXR, t1, t0))
    e('v_xor_b32 v%d, 2, v%d' % (t1, t1)); e('v_lshl_add_u32 v%d, v%d, 4, v%d' % (vXR + 1, t1, t0))
    for j in (1, 2):
        e('v_add_u32 v%d, %d, v%d' % (vXR + 2 * j, 3 * j * SLOT, vXR)); e('v_add_u32 v%d, %d, v%d' % (vXR + 2 * j + 1, 3 * j * SLOT, vXR + 1))
    e('s_mov_b32 s%d, 256' % sNO); e('s_mov_b32 s%d, %d' % (sNH, 32 * 8192 - 1024)); e('s_mov_b32 s%d, %d' % (sNT, 64 * 8192))
    e('s_lshl_b32 s34, s59, 22'); e('s_lshl_b32 s35, s58, 19'); e('s_add_u32 s34, s34, s35')
    if OPT['kvsame']: e('s_mov_b32 s34, 0')
    addp(sK, 34); subb(sK); srd(e, sK, 4 * 131072 + BIAS)
    addp(sV, 34); subb(sV); srd(e, sV, 4 * 131072 + BIAS)
    e('s_mul_i32 s34, s58, %d' % (512 * 1280)); addp(sWO, 34); subb(sWO); srd(e, sWO, 512 * 1280 + BIAS)
    e('s_and_b32 s92, s59, 3'); e('s_mul_i32 s92, s92, 163840'); e('s_lshr_b32 s93, s59, 2'); e('s_mul_i32 s93, s93, 10240')
    e('s_add_u32 s92, s92, s93'); e('s_add_u32 s92, s92, %d' % BIAS)
    e('s_mov_b32 s%d, 0' % sKVH); e('s_mov_b32 s%d, 0' % sH)
    e('s_mov_b32 s%d, 0x%x' % (sTHR, fbits(65536.0)))
    e('s_mov_b32 s%d, 0x%x' % (sC, fbits(math.log2(math.e) / math.sqrt(128.0))))
    e('s_lshl_b32 s34, s3, 4'); e('s_add_u32 s34, s34, s59')
    if OPT['fuse']:
        srd(e, sOUT, 16 * 128 * 2560); srd(e, sWA, 0x4000000)
        e('s_lshl_b32 s35, s34, 3'); addp(sDBG, 35); srd(e, sDBG, 8)
        e('s_cmp_eq_u32 s%d, 0' % sWV); e('s_cselect_b32 s%d, 8, 0' % (sDBG + 2))
        e('s_lshl_b32 s%d, s34, 9' % sFB); e('s_add_u32 s%d, s%d, %d' % (sFB, sFB, FLAG0))
        e('s_lshl_b32 s94, s58, 3'); e('s_add_u32 s94, s94, s%d' % sFB)
        e('s_mov_b32 s%d, s58' % sDBO)
        e('s_or_b32 s%d, s%d, 1' % (sTAG, sTAG))
        e('s_lshr_b32 s35, s%d, 12' % sWV)
        unit_bases(e, 58, 35, sRB, sOB, 93)
    e('s_lshl_b32 s34, s34, 3'); e('s_add_u32 s34, s34, s58')
    e('s_mov_b32 s95, s59'); e('s_mul_i32 s34, s34, 163840'); addp(sWS, 34); srd(e, sWS, 163840)
    pre = []
    if OPT['pre']:
        e('s_lshr_b32 s35, s%d, 12' % sWV)
        e('s_lshl_b32 s34, s95, 2'); e('s_add_u32 s34, s34, s35')
        e('s_mul_i32 s93, s34, 10240'); e('s_add_u32 s93, s93, %d' % BIAS)
        e('s_mul_i32 s94, s34, 81920'); e('s_add_u32 s94, s94, %d' % BIAS)
        if OPT['pre'] == 1:
            e('v_lshlrev_b32 v54, 4, v0')
            for j in range(10):
                pre.append(['s_add_u32 s34, s94, %d' % (j * 8192), ('DMA', 'buffer_load_dwordx4 v[64:67], v54, %s, s34 offen' % vr('s', sN, 4), 'pf')])
            for j in range(10):
                pre.append(['s_add_u32 s34, s93, %d' % (j * 1024), ('DMA', 'buffer_load_dwordx4 v[64:67], v54, %s, s34 offen' % vr('s', sWO, 4), 'pf')])
        else:
            sh = 7 if OPT['pre'] == 2 else 6; n = 10240 >> sh; per = 1024 >> sh
            for j in range((n + 63) // 64):
                e('v_add_u32 v54, %d, v0' % (64 * j)); e('v_min_u32 v54, %d, v54' % (n - 1))
                e('v_lshlrev_b32 v%d, %d, v54' % (55 + j, sh))
                e('v_lshrrev_b32 v63, %d, v54' % (10 - sh)); e('v_and_b32 v54, %d, v54' % (per - 1)); e('v_lshlrev_b32 v54, %d, v54' % sh)
                e('v_lshl_add_u32 v%d, v63, 13, v54' % (59 + j))
            for j in range((n + 63) // 64): pre.append([('DMA', 'buffer_load_dword v64, v%d, %s, s94 offen' % (59 + j, vr('s', sN, 4)), 'pf')])
            for j in range((n + 63) // 64): pre.append([('DMA', 'buffer_load_dword v64, v%d, %s, s93 offen' % (55 + j, vr('s', sWO, 4)), 'pf')])
        if OPT['prel'] == 0:
            for it in flat(pre): emit_item(e, it)
    Wl = [('W', i) for i in range(10)]
    B0 = parse_order(BODY, Wl); B1 = parse_order(BODY, Wl, 1)
    sa = Seg([('A', i) for i in range(10)] + B0[:9], 10, 8, 'a', auto_dma=False)
    def xr(i): return [('WAITV', XS[i])] + x_reads(i, XS[i])
    def dm(st, slot, l, after=None):
        d = dma_items(st, slot)
        if after is not None: d[0] = [('WAITL', 'xr%d' % after)] + d[0]
        sa.put(d, l, l + 4)
    for it in xr(0): emit_item(e, it)
    e.wait_v({AS(0)}); e('s_barrier')
    m0 = mfmas(('A', 0), AS(0))
    for j in range(PF): emit_reads(e, m0[j], j)
    e.wait_l({'xr0'}); issue(('A', 3), AS(3))
    stamp(e, 1)
    sa.add(0, xr(1)); sa.add(2, xr(2)); dm(('x', 6), XS[6], 3, 1); dm(('A', 4), AS(4), 7, 2)
    sa.add(9, xr(3)); sa.add(11, xr(4)); dm(('x', 7), XS[7], 12, 3); dm(('A', 5), AS(5), 16, 4)
    sa.add(17, xr(5)); dm(('A', 6), AS(6), 20, 5); dm(('x', 8), XS[8], 16 + 9)
    dm(('x', 9), XS[9], 32 + 9); sa.add(32 + 13, xr(6)); dm(('A', 7), AS(7), 48 + 1, 6)
    dm(B0[1], 1, 48 + 9); sa.add(48 + 13, xr(7)); dm(('A', 8), AS(8), 64 + 1, 7)
    sa.add(64 + 9, xr(8)); dm(('A', 9), AS(9), 64 + 12, 8); sa.add(80 + 1, xr(9)); dm(B0[0], 0, 80 + 4, 9)
    dm(B0[2], 2, 80 + 9); dm(B0[3], 3, 80 + 13)
    for j in range(4, 8): sa.put(dma_items(B0[j], j), (j + 2) * 16 + 9, (j + 2) * 16 + 16)
    sa.put(qconv(0), 144 + 6, 144 + 10); sa.put(qconv(1), 144 + 10, 144 + 14); sa.put(qconv(2), 144 + 14, 144 + 16)
    if OPT['pre'] and OPT['prel']: sa.put(pre, OPT['prel'], OPT['prel'] + 2 * len(pre))
    if OPT['fuse']:
        sa.add(90, ['v_mov_b32 v64, s%d' % sTAG, 'v_accvgpr_write_b32 a192, v64', 'v_accvgpr_write_b32 a193, 0'])
        sa.add(93, one_lane([('VM', 'buffer_atomic_cmpswap a[192:193], off, %s, 0 sc0' % vr('s', sDBG, 4), 'tag')]), front=True)
    emit_steps(e, sa, 0, 10)
    for it in qconv(3): e(it)
    def body(h):
        sg = Seg(B0 + B1[:8], 27, 0, 'b')
        plan_attn(sg, True)
        if h > 0: plan_epi(sg, h - 1, 0)
        sg.add(0, [('STAMP', 2 + h)])
        sg.add(sg.lin(18, 2), [('NEXT',)])
        if OPT['fuse'] and h == 1:
            sg.add(1, ['v_accvgpr_read_b32 v%d, a192' % vT0, 's_lshr_b32 s%d, s%d, 10' % (sTMP, sWV), 's_add_u32 s%d, s%d, %d' % (sTMP, sTMP, SCR)])
            sg.add(2, ['v_mov_b32 v%d, s%d' % (vT1, sTMP), 'v_readfirstlane_b32 s%d, v%d' % (sTMP, vT0)])
            sg.add(3, ['s_cmp_eq_u32 s%d, 0' % sTMP, 's_cselect_b32 s%d, s%d, s%d' % (sTMP, sTAG, sTMP), 'v_mov_b32 v%d, s%d' % (vT0, sTMP)])
            sg.add(4, [('LDS', 'ds_write_b32 v%d, v%d' % (vT1, vT0), 'tagw')])
            sg.add(7, [('WAITL', 'tagw')])
        if OPT['fuse'] and h == 2:
            sg.add(1, ['v_mov_b32 v%d, %d' % (vT1, SCR)])
            sg.add(2, [('LDS', 'ds_read_b32 v%d, v%d' % (vT0, vT1), 'tagr')])
            sg.add(6, [('WAITL', 'tagr'), 'v_readfirstlane_b32 s%d, v%d' % (sTAG, vT0)])
            sg.add(8, ['s_xor_b32 s%d, s%d, 0x5bd1e995' % (sTAG + 1, sTAG), 's_brev_b32 s%d, s%d' % (sTAG + 1, sTAG + 1)])
        if OPT['pin']:
            def grp(mod, last):
                g = [[('DMA', 'buffer_load_dwordx4 v%d, %s, s92 offen offset:%d%s lds' % (vST, vr('s', sWO, 4), 1024 * j, mod), 'pf')] for j in range(4)]
                g[0] = ['s_mov_b32 m0, %d' % SCR] + g[0]
                if last: g[3].append('s_add_u32 s92, s92, 3072')
                return g
            sg.put(grp(' nt', False), 5 * 16 + 1, 5 * 16 + 8)
            sg.put(grp('', True), (5 + OPT['pind']) * 16 + 1, (5 + OPT['pind']) * 16 + 8)
        return sg
    sb = body(0)
    emit_steps(e, sb, 0, NV)
    e.label('L_common')
    stc = e.state()
    emit_steps(e, sb, NV, 26)
    e('s_add_u32 s%d, s%d, 131072' % (sKVH, sKVH))
    e('s_add_u32 s%d, s%d, 1' % (sH, sH))
    e('s_cmp_eq_u32 s%d, 1' % sH); e('s_cbranch_scc1 L_v1')
    e('s_cmp_eq_u32 s%d, 2' % sH); e('s_cbranch_scc1 L_v2')
    ste = e.state()
    G1 = [('G', 0, t) for t in range(4)] + [('G', 1, t) for t in range(4)] + [('G', 0, 4), ('G', 0, 5), ('G', 1, 4), ('G', 1, 5)]
    G2 = [('G', 2, t) for t in range(6)] + [('G', c, t) for c in range(3) for t in (6, 7)] + [('G', c, t) for c in (3, 4) for t in range(8)]
    if OPT['fuse']:
        G2 = [('G', 2, t) for t in range(3)] + [('G', c, t) for c in range(2) for t in (6, 7)] + [('G', 2, t) for t in range(3, 8)] + \
             [('G', c, t) for c in (3, 4) for t in range(8)]
    sg = Seg(parse_order(BODY3, G1) + G2, 56, 0, 'c')
    plan_attn(sg, False); plan_epi(sg, 2, 0)
    sg.add(0, [('STAMP', 5)]); sg.add(28 * 16, [('STAMP', 6)])
    sg.put(epilogue(3), 28 * 16 + 1, 31 * 16)
    if OPT['fuse']:
        for c, (a0, a1) in enumerate(((33, 35), (35, 37), (40, 43), (48, 51))): sg.put(gout(c), a0 * 16 + (10 if c == 2 else 3), a1 * 16)
        sg.put(red_setup(), 31 * 16 + 1, 33 * 16)
        for sy, (st, tg) in enumerate(((40, 'st1'), (46, 'st2'), (54, 'st3'))):
            sg.prebar[st] = [('WAITV', tg)]; sg.add(st * 16 + 8, flag(sy), front=True)
        sg.add(43 * 16, poll(0)); sg.add(45 * 16, pcheck(3))
        sg.put(rloads(0, 0, vLM) + rloads(1, 32, vLM), 45 * 16 + 1, 47 * 16)
        sg.put(rsum(0, 0, 128) + rsum(1, 32, 144), 49 * 16, 50 * 16)
        sg.put(rout(0, 128, vOM), 49 * 16 + 12, 50 * 16 + 4); sg.put(rout(1, 144, vOM), 50 * 16 + 5, 50 * 16 + 13)
        sg.add(49 * 16, poll(1)); sg.add(51 * 16, pcheck(4))
        sg.put(rloads(2, 64, vLM), 51 * 16 + 1, 52 * 16)
        sg.put(rsum(2, 64, 128), 54 * 16, 54 * 16 + 8); sg.put(rout(2, 128, vOM), 54 * 16 + 12, 55 * 16 + 5)
    else:
        for c, (a0, a1) in enumerate(((36, 40), (40, 44), (44, 48), (48, 55))): sg.put(gout(c), a0 * 16 + 3, a1 * 16)
    go = gout(4); n = len(go) // 4
    sg.put(go[:n + 1], 55 * 16 + 7, 55 * 16 + 11); sg.put(go[n + 1:2 * n + 1], 55 * 16 + 11, 55 * 16 + 15)
    emit_steps(e, sg, 0, 56)
    for it in go[2 * n + 1:]: emit_item(e, it)
    stamp(e, 7)
    if OPT['fuse']: gen_tail(e)
    if OPT['stamp']:
        e('s_waitcnt vmcnt(0)'); stamp(e, 8)
        e('s_waitcnt lgkmcnt(0)')
        e('s_cmp_lg_u32 s%d, 0' % sWV); e('s_cbranch_scc1 L_end')
        e('s_load_dwordx2 s[56:57], s[0:1], 96'); e('s_waitcnt lgkmcnt(0)')
        e('s_lshl_b32 s34, s2, 7'); e('s_add_u32 s34, s34, 0x4000000'); addp(56, 34); srd(e, 56, 128)
        for i in range(12):
            e('v_mov_b32 v%d, s%d' % (32 + i, 60 + 2 * i))
            e('v_mov_b32 v%d, s%d' % (48 + i, 88 if i == 0 else 36 + 2 * min(i, 9)))
        e('v_mov_b32 v64, 0')
        for i in (0, 1, 2, 4, 5, 6): e('buffer_store_dwordx4 v[%d:%d], v64, s[56:59], 0 offen offset:%d' % (32 + 4 * i, 35 + 4 * i, 16 * i))
    e.label('L_end')
    e('s_endpgm')
    for h in (1, 2):
        e.label('L_v%d' % h)
        e.set_state(ste)
        emit_steps(e, body(h), 0, NV)
        e('s_branch L_common')
        s = e.state(); assert s[1] == stc[1] and s[2] == stc[2], (s[1:], stc[1:])
    for t, rs in sorted(set(RARE)): emit_rare(e, t, rs)

def gen_k2(e):
    e.label(K2)
    e.hist = []; e.lq = []; e.vq = []
    e('s_cmp_ge_u32 s2, 1280'); e('s_cbranch_scc1 L_end2')
    e('s_load_dwordx2 s[4:5], s[0:1], 96'); e('s_load_dwordx2 s[8:9], s[0:1], 80')
    e('s_mul_hi_u32 s12, s2, 0xcccccccd'); e('s_lshr_b32 s12, s12, 3')
    e('s_mul_i32 s13, s12, 10'); e('s_sub_u32 s13, s2, s13')
    e('s_and_b32 s14, s12, 3'); e('s_lshr_b32 s15, s12, 2')
    e('v_and_b32 v1, 7, v0'); e('v_bfe_u32 v2, v0, 3, 3'); e('v_lshrrev_b32 v3, 6, v0')
    e('v_lshl_add_u32 v1, v3, 3, v1')
    e('v_lshlrev_b32 v4, 4, v1'); e('v_lshl_add_u32 v4, v2, 9, v4')
    e('v_mul_u32_u24 v5, 2560, v1'); e('v_lshl_add_u32 v5, v2, 4, v5')
    e('s_mul_i32 s16, s14, 40960'); e('s_lshl_b32 s17, s13, 12'); e('s_add_u32 s16, s16, s17')
    e('s_mul_i32 s17, s15, %d' % (8 * 163840)); e('s_add_u32 s16, s16, s17')
    e('s_and_b32 s18, s15, 15'); e('s_lshl_b32 s18, s18, 2'); e('s_add_u32 s18, s18, s14'); e('s_mul_i32 s18, s18, %d' % (32 * 2560))
    e('s_lshr_b32 s19, s15, 4'); e('s_mul_i32 s19, s19, 1280'); e('s_add_u32 s18, s18, s19')
    e('s_lshl_b32 s19, s13, 7'); e('s_add_u32 s18, s18, s19')
    e('s_waitcnt lgkmcnt(0)')
    e('s_add_u32 s4, s4, s16'); e('s_addc_u32 s5, s5, 0'); srd(e, 4, 8 * 163840)
    srd(e, 8, 16 * 128 * 2560)
    for p in range(8):
        e('s_mov_b32 s20, %d' % (p * 163840))
        e('buffer_load_dwordx4 %s, v4, s[4:7], s20 offen' % vr('v', 8 + 4 * p, 4), tag=p)
    e('v_add_u32 v5, s18, v5')
    e('s_mov_b32 s21, 0xffff0000')
    for p in range(8):
        e.wait_v({p})
        for i in range(4):
            src = 8 + 4 * p + i
            if p == 0:
                e('v_lshlrev_b32 v%d, 16, v%d' % (40 + 2 * i, src)); e('v_and_b32 v%d, s21, v%d' % (41 + 2 * i, src))
            else:
                e('v_lshlrev_b32 v6, 16, v%d' % src); e('v_and_b32 v7, s21, v%d' % src)
                e('v_add_f32 v%d, v%d, v6' % (40 + 2 * i, 40 + 2 * i)); e('v_add_f32 v%d, v%d, v7' % (41 + 2 * i, 41 + 2 * i))
    for i in range(4): e('v_cvt_pk_bf16_f32 v%d, v%d, v%d' % (8 + i, 40 + 2 * i, 41 + 2 * i))
    e('buffer_store_dwordx4 v[8:11], v5, s[8:11], 0 offen')
    e.label('L_end2')
    e('s_endpgm')

def kd(name, nv, acc, ns=102):
    return '''.amdhsa_kernel %s
  .amdhsa_next_free_vgpr %d
  .amdhsa_next_free_sgpr %d
  .amdhsa_accum_offset %d
  .amdhsa_group_segment_fixed_size 0
  .amdhsa_kernarg_size 104
  .amdhsa_user_sgpr_count 2
  .amdhsa_user_sgpr_kernarg_segment_ptr 1
  .amdhsa_system_sgpr_workgroup_id_x 1
.end_amdhsa_kernel
''' % (name, nv, ns, acc)

def main():
    ref = open('cdna_kernels/%s.s.ref' % NAME).read().split('\n')
    head = [l for l in ref if l.startswith(';') and '@launch' not in l]
    e = Em()
    for l in head: e.raw(l)
    if OPT['fuse'] and not OPT['stamp']:
        e.raw('; @launch grid=(256,1,1) block=(256,1,1) lds=%d' % LDS_BYTES)
    else:
        e.raw('; @launch kernel=%s grid=(256,1,1) block=(256,1,1) lds=%d' % (K1, LDS_BYTES))
    if not OPT['fuse']: e.raw('; @launch kernel=%s grid=(1280,1,1) block=(256,1,1) lds=0' % K2)
    e.raw('.amdgcn_target "amdgcn-amd-amdhsa--gfx950"'); e.raw('.text')
    for n, g in ((K1, gen_k1), (K2, gen_k2))[:1 if OPT['fuse'] else 2]:
        e.raw('.globl %s' % n); e.raw('.p2align 8'); e.raw('.type %s,@function' % n)
        g(e)
    e.raw('.section .rodata,"a"'); e.raw('.p2align 6'); e.raw(kd(K1, 512, 256))
    if not OPT['fuse']: e.raw('.p2align 6'); e.raw(kd(K2, 48, 48, 32))
    open(sys.argv[1], 'w').write(e.text())
    print('pads', e.npad, 'lines', len(e.out))
main()
```

```python
import sys, struct, math
sys.path.insert(0, 'gen')
from asmlib import Em

NAME = 'concat_heads__mha_block_cached__mha_block_cached__near_ridge'
K1 = NAME + '_kernel'
K2 = 'reduce_partials_kernel'

OPT = dict(lay=1, sg=56, f0=12, f1=15, f2=19, p0=14, p1=17, inl=1, kvs=4, wsp=2, wst=0, kvsame=0, mf16=0, nomf=0, fuse=0, tmo=20000, nopoll=0, pre=0, prel=0, wpf=0, pin=0, pind=6, wnt=0, xnt=0, ant=0, gnt=0, stamp=0, nt=1, pf=6, nv=3, nodma=0, nobar=0, nost=0, stmod=0, stspan=120, stsame=0, wopf=0, pfnt=0, touch=0, rot=0, rt=0)
for a in sys.argv[2:]:
    k, v = a.split('='); OPT[k] = int(v)

LAY = OPT['lay']; KS = (1 << 20) + (LAY - 1) * 1024
PITCH = 2112; SLOT = 8 * PITCH; NSLOT = 9; BIAS = 4096
SCR = NSLOT * SLOT; TAGL = SCR + 4096; LDS_BYTES = SCR + 4096 + 64
PF = OPT['pf']; NV = OPT['nv']
def fbits(x): return struct.unpack('<I', struct.pack('<f', x))[0]

vTS, vTV, vKE, vKO = 1, 4, 7, 10
vON, vOV, vOK, vOWO = 13, 15, 17, 19
vST, vL, vRL = 21, 22, 23
vE = [24, 25, 26, 27]; vTA, vTB, vT0, vT1 = 28, 29, 30, 31
QB = 32; OACC = 64; SB = [128, 144]; NEGM = 160; PB = [176, 184]; QACC = 192; GV = 128
OB = [('v', 32), ('a', 160), ('a', 192), ('v', 192)]
QL = [('v', 32), ('a', 160), ('a', 192), ('v', 192)]
vP0, vP1 = 13, 14
def blk(k, b): return [(k, b + 16 * T) for T in range(4)]
R0, R1, R2, V0 = blk('a', 0), blk('a', 64), blk('a', 128), [('v', 32), ('v', 48), ('v', 224), ('v', 240)]
def gacc(c, ti):
    return [R0 if ti < 4 else blk('v', 128), R1 if ti < 4 else blk('v', 64), R0, R1, blk('v', 128)][c]
PARK = [('a', 128), ('v', 224)]; STG = 224
TMAJ = {('G', 4, 7), ('W', 2, 0), ('W', 3, 0)}
AF = 224
sK, sV, sN, sWO, sX, sWS = 4, 8, 12, 16, 20, 56
sWV, sKVH, sNO, sNH, sNT, sA, sB, sH, sTHR, sC = 24, 25, 26, 27, 28, 29, 30, 31, 32, 33

def vr(k, lo, n): return '%s[%d:%d]' % (k, lo, lo + n - 1)

class MF:
    def __init__(self, d, b, c, reads):
        self.d, self.b, self.c, self.reads = d, b, c, reads

def t_reads(base, slot, half, kb, T):
    off = (slot % 3) * SLOT + half * 1024 + kb * 4 * PITCH + T * 64
    a = 'v%d' % (base + slot // 3)
    return [('ds_read_b64_tr_b16', 0, 2, a, off), ('ds_read_b64_tr_b16', 2, 2, a, off + 512)]
def k_reads(slot, half, kk):
    off = (slot % 3) * SLOT + half * 1024 + (kk >> 1) * 64
    a = 'v%d' % ((vKO if kk & 1 else vKE) + slot // 3)
    return [('ds_read_b128', 0, 4, a, off)]

def qk(slot, half, t, c0, h):
    d = vr('v', SB[t & 1], 16); qk_, qb = QL[h]
    return [MF(d, vr(qk_, qb + 4 * kk, 4), (c0 if kk == 0 else d), k_reads(slot, half, kk)) for kk in range(8)]
def pv(slot, half, t):
    r = []
    for kb in range(2):
        for T in range(4):
            d = vr('v', OACC + 16 * T, 16)
            r.append(MF(d, vr('v', PB[t & 1] + 4 * kb, 4), ('0' if (t == 0 and kb == 0) else d),
                        t_reads(vTV, slot, half, kb, T)))
    return r

def mfmas(st, slot):
    k = st[0]
    order = [(kx, T) for kx in range(4) for T in range(4)]
    if st in TMAJ or (k == 'W' and st[2] == 9): order = [(kx, T) for T in range(4) for kx in range(4)]
    if k == 'W':
        i = st[2]; r = []
        for kx, T in order:
            d = vr('v', QACC + 16 * T, 16)
            r.append(MF(d, vr('a', (4 * i + kx) * 4, 4), ('0' if (i == 0 and kx == 0) else d),
                        t_reads(vTS, slot, kx >> 1, kx & 1, T)))
        return r
    if k == 'G':
        c, ti = st[1], st[2]; acc = gacc(c, ti)
        ok, ob = OB[ti >> 1]; r = []
        for kx, T in order:
            d = vr(acc[T][0], acc[T][1], 16)
            r.append(MF(d, vr(ok, ob + ((ti & 1) * 4 + kx) * 4, 4), ('0' if (ti == 0 and kx == 0) else d),
                        t_reads(vTS, slot, kx >> 1, kx & 1, T)))
        return r
    h, i = st[1], st[2]
    if i == 0: return qk(slot, 0, 0, '0', h) + qk(slot, 1, 1, '0', h)
    if i == 15: return pv(slot, 0, 14) + pv(slot, 1, 15)
    return qk(slot, 1, i + 1, vr('v', NEGM, 16), h) + pv(slot, 0, i - 1)

NT = ' nt' if OPT['nt'] else ''
vXO = 44
vXR = 48
def dma_tile(st, slot):
    ins = ['s_add_u32 m0, s%d, %d' % (sWV, slot * SLOT)]
    def four(srd0, v0, so0, srd1, v1, so1, mod=''):
        return ['buffer_load_dwordx4 v%d, %s, s%d offen%s lds' % (v0, vr('s', srd0, 4), so0, mod),
                'buffer_load_dwordx4 v%d, %s, s%d offen offset:1024%s lds' % (v1, vr('s', srd1, 4), so1, mod),
                'buffer_load_dwordx4 v%d, %s, s%d offen offset:%d%s lds' % (v0 + 1, vr('s', srd0, 4), so0, PITCH, mod),
                'buffer_load_dwordx4 v%d, %s, s%d offen offset:%d%s lds' % (v1 + 1, vr('s', srd1, 4), so1, PITCH + 1024, mod)]
    k = st[0]
    if k == 'G':
        o = st[2] * 81920 + st[1] * 256
        ins += ['s_mov_b32 s%d, %d' % (sA, o), 's_mov_b32 s%d, %d' % (sB, o + 40960 - 1024)]
        return ins, four(sWO, vOWO, sA, sWO, vOWO, sB, ' nt' * OPT['gnt']), []
    if k == 'W':
        o = st[2] * 64 * 8192 + st[1] * 256
        ins += ['s_mov_b32 s%d, %d' % (sA, o), 's_mov_b32 s%d, %d' % (sB, o + 32 * 8192 - 1024)]
        return ins, four(sN, vON, sA, sN, vON, sB, ' nt' * OPT['wnt']), []
    if k == 'x':
        ins += ['s_mov_b32 s%d, %d' % (sA, st[1] * 128)]
        return ins, four(sX, vXO, sA, sX, vXO + 2, sA, ' nt' * OPT['xnt']), []
    if k == 'P':
        return ['s_mov_b32 m0, %d' % SCR], ['buffer_load_dwordx4 v%d, %s, s92 offen offset:%d lds' % (vST, vr('s', sWO, 4), 1024 * j) for j in range(4)], ['s_add_u32 s92, s92, 3072']
    t = st[2]; ho = st[1] * 131072
    h0 = (sK, vOK, 0) if t == 0 else (sV, vOV, t - 1)
    h1 = (sV, vOV, 15) if t == 15 else (sK, vOK, t + 1)
    ins += ['s_mov_b32 s93, %d' % (ho + h0[2] * 8192), 's_mov_b32 s95, %d' % (ho + h1[2] * 8192 - 1024)]
    return ins, four(h0[0], h0[1], 93, h1[0], h1[1], 95, NT), []

def timeline(kinds, extra=()):
    pos = []; s = 0
    for ch in kinds:
        pos.append(s)
        if ch != 'P': s += 1
    occ = {}
    def place(t, j, q):
        while t in occ: t += 1
        occ[t] = (j, q); return t
    for j, ch in enumerate(kinds):
        if j >= 8 and ch != 'X':
            t = pos[j - 8] * 16 + 9
            for q in range(4): t = place(t, j, q) + OPT['wsp']
    for k, t in enumerate(extra):
        for q in range(4): t = place(t, -1 - k, q) + 2
    last2 = -10 ** 6; lead = 10 ** 6
    for j, ch in enumerate(kinds):
        if j >= 8 and ch == 'X':
            for q in range(4):
                last2 = max(2 * (pos[j - 8] * 16 + 9), last2 + OPT['kvs'])
                t = place(last2 // 2, j, q)
            lead = min(lead, (pos[j] - 1) * 16 + 8 - t)
    return sorted((t, j, q) for t, (j, q) in occ.items()), lead

def put_plan(sg, plan, tiles, slots, t0):
    prev = None
    for T, j, q in plan:
        pre, four, post = dma_tile(tiles[j] if j >= 0 else ('P',), slots(j))
        su = ([pre[0]] if prev != j else []) + (pre[1:] if q == 0 else [])
        it = [('DMA', four[q], slots(j) if j >= 0 else 'pf')] + (post if q == 3 else [])
        l = T + t0
        if l == 0: it = su + it
        elif su: sg.add(l - 1, su)
        sg.add(l, it, front=True)
        prev = j

def dma_items(st, slot):
    pre, four, post = dma_tile(st, slot)
    it = [[('DMA', f, slot)] for f in four]
    it[0] = pre + it[0]; it[3] = it[3] + post
    return it

def x_reads(i, slot):
    return [('LDS', 'ds_read_b128 %s, v%d offset:%d' % (vr('a', (4 * i + kx) * 4, 4), vXR + (kx & 1) + 2 * (slot // 3), (slot % 3) * SLOT + (kx >> 1) * 64), 'xr%d' % i)
            for kx in range(4)]

def emit_reads(e, m, gi):
    f = AF + 4 * (gi % 8)
    for op, o, n, a, off in m.reads:
        e('%s %s, %s offset:%d' % (op, vr('a', f + o, n), a, off), tag=gi % 16)

def softmax_pairs(t):
    S = SB[t & 1]; P = PB[t & 1]; g = []
    for p in range(8):
        ea, eb = vE[(p & 1) * 2], vE[(p & 1) * 2 + 1]
        ex = ['v_exp_f32 v%d, v%d' % (ea, S + 2 * p), 'v_exp_f32 v%d, v%d' % (eb, S + 2 * p + 1)]
        if p == 0:
            rest = ['v_cvt_pk_bf16_f32 v%d, v%d, v%d' % (P + p, ea, eb), 'v_add_f32 v%d, v%d, v%d' % (vTA, ea, eb)]
        elif p == 1:
            rest = ['v_cvt_pk_bf16_f32 v%d, v%d, v%d' % (P + p, ea, eb), 'v_add_f32 v%d, v%d, v%d' % (vTB, ea, eb)]
        else:
            rest = ['v_add_f32 v%d, v%d, v%d' % (vTA, vTA, ea), 'v_cvt_pk_bf16_f32 v%d, v%d, v%d' % (P + p, ea, eb),
                    'v_add_f32 v%d, v%d, v%d' % (vTB, vTB, eb)]
        g.append((ex, rest))
    return g

def rowmax(S, dst):
    r = ['v_max3_f32 v%d, v%d, v%d, v%d' % (dst, S, S + 1, S + 2), 'v_max3_f32 v%d, v%d, v%d, v%d' % (vT1, S + 3, S + 4, S + 5)]
    for i in range(6, 16, 4):
        r.append('v_max3_f32 v%d, v%d, v%d, v%d' % (dst, dst, S + i, S + i + 1))
        if i + 2 < 16: r.append('v_max3_f32 v%d, v%d, v%d, v%d' % (vT1, vT1, S + i + 2, S + i + 3))
    r += ['v_max_f32 v%d, v%d, v%d' % (dst, dst, vT1), 'v_mov_b32 v%d, v%d' % (vT1, dst),
          'v_permlane32_swap_b32 v%d, v%d' % (dst, vT1), 'v_max_f32 v%d, v%d, v%d' % (dst, dst, vT1)]
    return r

RARE = []
def check(t, rs):
    return ['v_add_f32 v%d, v%d, v%d' % (vTA, vTA, vTB), 'v_cmp_nge_f32 vcc, s%d, v%d' % (sTHR, vTA),
            ('RARE', t, rs), 'v_add_f32 v%d, v%d, v%d' % (vL, vL, vTA)]

def emit_rare(e, t, uids):
    S = SB[t & 1]; S2 = SB[(t + 1) & 1]
    for u in uids:
        e.label('L_rs%d' % u); e('s_mov_b32 s35, %d' % u); e('s_branch L_rare%d' % t)
    e.label('L_rare%d' % t)
    e.hist = []
    e('s_nop 15')
    for s in rowmax(S, vT0): e(s)
    e('v_max_f32 v%d, 0, v%d' % (vT0, vT0))
    e('v_sub_f32 v%d, 0, v%d' % (vT1, vT0))
    e('v_exp_f32 v%d, v%d' % (vT1, vT1))
    for i in range(16): e('v_sub_f32 v%d, v%d, v%d' % (S + i, S + i, vT0))
    if t < 15:
        for i in range(16): e('v_sub_f32 v%d, v%d, v%d' % (S2 + i, S2 + i, vT0))
        for i in range(16): e('v_sub_f32 v%d, v%d, v%d' % (NEGM + i, NEGM + i, vT0))
    for i in range(64): e('v_mul_f32 v%d, v%d, v%d' % (OACC + i, OACC + i, vT1))
    e('v_mul_f32 v%d, v%d, v%d' % (vL, vL, vT1))
    for ex, rest in softmax_pairs(t):
        for s in ex + rest: e(s)
    e('v_add_f32 v%d, v%d, v%d' % (vTA, vTA, vTB))
    e('s_nop 3')
    for u in uids[:-1]:
        e('s_cmp_eq_u32 s35, %d' % u); e('s_cbranch_scc1 L_back%d' % u)
    e('s_branch L_back%d' % uids[-1])

def epilogue(h):
    ok, ob = OB[h]; r = []
    for T in range(4):
        for p in range(8):
            a = OACC + 16 * T + 2 * p
            r += ['v_mul_f32 v%d, v%d, v%d' % (a, a, vRL), 'v_mul_f32 v%d, v%d, v%d' % (a + 1, a + 1, vRL)]
            if ok == 'v':
                r.append('v_cvt_pk_bf16_f32 v%d, v%d, v%d' % (ob + 8 * T + p, a, a + 1))
            else:
                r += ['v_cvt_pk_bf16_f32 v%d, v%d, v%d' % (a, a, a + 1), 'v_accvgpr_write_b32 a%d, v%d' % (ob + 8 * T + p, a)]
    return r

def qconv(T, h):
    r = []; qk_, qb = QL[h]
    for p in range(8):
        a = QACC + 16 * T + 2 * p
        r += ['v_mul_f32 v%d, s%d, v%d' % (a, sC, a), 'v_mul_f32 v%d, s%d, v%d' % (a + 1, sC, a + 1)]
        if qk_ == 'v': r.append('v_cvt_pk_bf16_f32 v%d, v%d, v%d' % (qb + 8 * T + p, a, a + 1))
        else: r += ['v_cvt_pk_bf16_f32 v%d, v%d, v%d' % (a, a, a + 1), 'v_accvgpr_write_b32 a%d, v%d' % (qb + 8 * T + p, a)]
    return r

def park(c, T):
    b = gacc(c, 0)[T][1]; r = []; pk, pb = PARK[c]
    for p in range(8):
        r += ['v_accvgpr_read_b32 v%d, a%d' % (vP0, b + 2 * p), 'v_accvgpr_read_b32 v%d, a%d' % (vP1, b + 2 * p + 1)]
        if pk == 'v': r.append('v_cvt_pk_bf16_f32 v%d, v%d, v%d' % (pb + 8 * T + p, vP0, vP1))
        else: r += ['v_cvt_pk_bf16_f32 v%d, v%d, v%d' % (vP0, vP0, vP1), 'v_accvgpr_write_b32 a%d, v%d' % (pb + 8 * T + p, vP0)]
    return r
def unpark(c, T):
    k, b = gacc(c, 7)[T]; r = []; pk, pb = PARK[c]
    for p in range(8):
        src = pb + 8 * T + p
        if pk == 'a': r.append('v_accvgpr_read_b32 v%d, a%d' % (b + 2 * p, src)); src = b + 2 * p
        r += ['v_and_b32 v%d, 0xffff0000, v%d' % (b + 2 * p + 1, src), 'v_lshlrev_b32 v%d, 16, v%d' % (b + 2 * p, src)]
    return r

def gout(c, split=False):
    acc = gacc(c, 7); r = []; sts = []
    for T in range(4):
        ak, ab = acc[T]
        for j in range(2):
            d0 = (ab if c in (1, 4) else STG + 8 * T) + 4 * j
            for p in range(4):
                a = ab + 8 * j + 2 * p; d = d0 + p
                if ak == 'a':
                    r += ['v_accvgpr_read_b32 v%d, a%d' % (d, a), 'v_accvgpr_read_b32 v%d, a%d' % (vE[p], a + 1),
                          'v_cvt_pk_bf16_f32 v%d, v%d, v%d' % (d, d, vE[p])]
                else:
                    r.append('v_cvt_pk_bf16_f32 v%d, v%d, v%d' % (d, a, a + 1))
            st = [('VM', 'buffer_store_dwordx4 %s, v%d, %s, s34 offen offset:%d%s' %
                   (vr('v', d0, 4), vST, vr('s', sWS, 4), 0 if LAY else ((T & 1) * 2 + j) * 1024,
                    ['', ' nt', ' sc1', ' sc0 sc1', ' sc0 sc1 nt'][2 if OPT['fuse'] else OPT['stmod']]), 'st%d' % c)]
            if LAY: st = ['s_mov_b32 s34, %d' % ((c * 8 + T * 2 + j) * KS)] + st
            elif T % 2 == 0 and j == 0: st = ['s_mov_b32 s34, %d' % ((c * 4 + T) * 2048)] + st
            (sts if split else r).append(st)
    return (r, sts) if split else r

sOUT, sWA, sDBG, sFLG = 80, 84, 96, 4
sRB, sOB, sFB, sTAG = 78, 79, 90, 100
sPEND, sMASK, sDBO, sTMP = 20, 21, 91, 23
vSEL, vLB, vOBS, vLM, vOM, vPO, vPD, vFD, vCNT = 4, 8, 9, 10, 11, 12, 16, 14, 18
FLAG0 = 0x3000000
def one_lane(ins): return ['s_mov_b64 exec, 1'] + ins + ['s_mov_b64 exec, -1']
def red_setup():
    t0, t1 = vPD, vPD + 1
    r = [['v_and_b32 v%d, 7, v0' % vPO, 'v_lshrrev_b32 v%d, 3, v0' % t0],
         ['v_lshlrev_b32 v%d, 4, v%d' % (vLB, vPO)] + (['v_and_b32 v%d, 1, v%d' % (t1, t0), 'v_lshl_add_u32 v%d, v%d, 9, v%d' % (vLB, t1, vLB),
          'v_lshrrev_b32 v%d, 4, v0' % t1, 'v_mul_u32_u24 v%d, %d, v%d' % (t1, KS, t1), 'v_add_u32 v%d, v%d, v%d' % (vLB, vLB, t1)] if LAY else
          ['v_lshl_add_u32 v%d, v%d, 9, v%d' % (vLB, t0, vLB)]),
         ['v_mul_u32_u24 v%d, 2560, v%d' % (vOBS, vPO), 'v_lshl_add_u32 v%d, v%d, 4, v%d' % (vOBS, t0, vOBS)],
         ['v_lshlrev_b32 v%d, 3, v%d' % (vPO, vPO)],
         ['v_bfe_u32 v%d, v0, 2, 1' % t0, 'v_lshrrev_b32 v%d, 5, v0' % t1, 'v_xor_b32 v%d, v%d, v%d' % (t0, t0, t1)],
         ['v_bfe_u32 v%d, v0, 4, 1' % t1, 'v_or_b32 v%d, v%d, v%d' % (t0, t0, t1)],
         ['v_bfe_u32 v%d, v0, 1, 1' % t1, 'v_lshl_add_u32 v%d, v%d, 2, v%d' % (t0, t0, t1)],
         ['v_bfe_u32 v%d, v0, 3, 1' % t1, 'v_lshl_add_u32 v%d, v%d, 1, v%d' % (t0, t1, t0)],
         ['v_and_b32 v%d, 1, v0' % t1, 'v_lshlrev_b32 v%d, 4, v%d' % (t1, t1)],
         ['v_mov_b32 v%d, 0x3f80' % vCNT, 'v_lshlrev_b32 v%d, v%d, v%d' % (t1, t1, vCNT)]]
    for k in range(4):
        r.append(['v_cmp_eq_u32 vcc, %d, v%d' % (k, t0), 'v_cndmask_b32 v%d, 0, v%d, vcc' % (vSEL + k, t1)])
    r.append(['v_mov_b32 v%d, s%d' % (vFD, sTAG), 'v_mov_b32 v%d, s%d' % (vFD + 1, sTAG + 1), 'v_mov_b32 v%d, 1' % vCNT])
    r.append(['s_add_u32 s%d, s%d, s94' % (sFLG, sWA), 's_addc_u32 s%d, s%d, 0' % (sFLG + 1, sWA + 1), 's_cmp_eq_u32 s%d, 0' % sWV,
              's_cselect_b32 s%d, 512, 0' % (sFLG + 2), 's_mov_b32 s%d, %d' % (sPEND, 0x12 if OPT['inl'] else 0x1f)])
    return r
def flag(sy):
    return one_lane([('VM', 'buffer_store_dwordx2 %s, off, %s, 0 offset:%d sc1' % (vr('v', vFD, 2), vr('s', sFLG, 4), sy * 128), 'fl')])
def poll(sy): return [('VM', 'buffer_load_dwordx2 %s, v%d, %s, s%d offen offset:%d sc1' % (vr('v', vPD, 2), vPO, vr('s', sWA, 4), sFB, sy * 128), 'poll')]
def pcmp():
    return ['v_cmp_eq_u64 vcc, %s, %s' % (vr('s', sTAG, 2), vr('v', vPD, 2)), 's_cmp_eq_u64 vcc, %s' % ('0x1234' if OPT['nopoll'] else '-1')]
def pcheck(bits):
    return [('WAITV', 'poll')] + pcmp() + ['s_cselect_b32 s%d, 0, 0x80000000' % sMASK, 's_cselect_b32 s%d, 0, %d' % (sTMP, bits),
            's_or_b32 s%d, s%d, s%d' % (sPEND, sPEND, sTMP), 'v_or_b32 v%d, s%d, v%d' % (vLM, sMASK, vLB), 'v_or_b32 v%d, s%d, v%d' % (vOM, sMASK, vOBS)]
def rloads(c, a0, vo, sb=sRB):
    return [['s_add_u32 s%d, s%d, %d' % (sTMP, sb, c * 8 * KS + p * 4096 if LAY else c * 8192 + p * 163840),
             ('VM', 'buffer_load_dwordx4 %s, v%d, %s, s%d offen sc1' % (vr('a', a0 + 4 * p, 4), vo, vr('s', sWA, 4), sTMP), 'rl%d_%d' % (c, p))] for p in range(8)]
def rsum(c, a0, d):
    D = vr('a', d, 16)
    return [[('WAITV', 'rl%d_%d' % (c, p)), 'v_mfma_f32_32x32x16_bf16 %s, %s, %s, %s' % (D, vr('v', vSEL, 4), vr('a', a0 + 4 * p, 4), D if p else '0')] for p in range(8)]
def rout(c, d, vo, sb=sOB):
    r = []
    for k in range(4):
        r += ['v_accvgpr_read_b32 v%d, a%d' % (24 + k, d + 2 * k), 'v_accvgpr_read_b32 v%d, a%d' % (28 + k, d + 2 * k + 1),
              'v_cvt_pk_bf16_f32 v%d, v%d, v%d' % (24 + k, 24 + k, 28 + k)]
    r.append(('VM', 'buffer_store_dwordx4 v[24:27], v%d, %s, s%d offen offset:%d' % (vo, vr('s', sOUT, 4), sb, c * 256), 'ro'))
    return r

def spread(gaps, items, g0, g1):
    n = g1 - g0
    for k, it in enumerate(items):
        gaps[g0 + k * n // len(items)].append(it)

def emit_item(e, it):
    if isinstance(it, tuple):
        if it[0] == 'RARE':
            u = it[2] * 16 + it[1]; e('s_cbranch_vccnz L_rs%d' % u); e.label('L_back%d' % u); RARE.append(u)
        elif it[0] == 'DMA':
            if OPT['nodma']: e.vq.append(it[2])
            else: e(it[1], tag=it[2])
        elif it[0] == 'LDS': e(it[1], tag=it[2])
        elif it[0] == 'VM':
            if not (OPT['nost'] and it[2].startswith('st')): e(it[1], tag=it[2])
        elif it[0] == 'WAITV': e.wait_v({it[1]})
        elif it[0] == 'WAITL': e.wait_l({it[1]})
        elif it[0] == 'NEXT':
            e('s_add_u32 s%d, s%d, 2' % (sA, sH))
            e('s_lshl_b32 s%d, s%d, 8' % (sNO, sA))
            e('s_cmp_lg_u32 s%d, 2' % sH)
            e('s_cbranch_scc1 L_notlast'); mark = len(e.out)
            e('s_mov_b32 s%d, s%d' % (sN, sWO)); e('s_mov_b32 s%d, s%d' % (sN + 1, sWO + 1))
            e('s_mov_b32 s%d, 0' % sNO); e('s_mov_b32 s%d, %d' % (sNH, 40960 - 1024)); e('s_mov_b32 s%d, %d' % (sNT, 81920))
            e('v_mov_b32 v%d, v%d' % (vON, vOWO)); e('v_mov_b32 v%d, v%d' % (vON + 1, vOWO + 1))
            for x in e.hist[-(len(e.out) - mark):]: x.ws = 0
            e.label('L_notlast')
        elif it[0] == 'STAMP':
            stamp(e, *it[1:])
    elif it == 's_barrier' and OPT['nobar']: pass
    elif it.startswith('buffer_store') and OPT['nost']: pass
    else:
        e(it, tag='st' if it.startswith('buffer_store') else None)

def stamp(e, idx, w=0):
    if not OPT['stamp'] or (OPT['wst'] and not w): return
    e('s_memtime s[%d:%d]' % (60 + 2 * idx, 61 + 2 * idx))
    r = 88 if idx == 0 else 36 + 2 * idx
    e('s_memrealtime s[%d:%d]' % (r, r + 1))

def flat(groups): return [x for g in groups for x in g]

class Seg:
    def __init__(self, L, n, slot0, rs, auto_dma=True):
        self.L, self.n, self.slot0, self.rs = L, n, slot0, rs
        self.steps = [i for i in range(n) if L[i][0] != 'P']
        self.g = {}; self.prebar = {}
        self.auto = auto_dma
    def slot(self, i): return (self.slot0 + i) % NSLOT
    def nxt(self, i):
        j = i + 1
        if j < len(self.L) and self.L[j][0] == 'P': j += 1
        return j if j < len(self.L) else None
    def lin(self, i, g): return self.steps.index(i) * 16 + g
    def add(self, lin, items, front=False):
        k = (self.steps[lin // 16], lin % 16)
        self.g[k] = (list(items) + self.g.get(k, [])) if front else (self.g.get(k, []) + list(items))
    def put(self, items, l0, l1):
        for k, it in enumerate(items): self.add(l0 + k * (l1 - l0) // len(items), it if isinstance(it, list) else [it])
    def find(self, st): return [i for i in self.steps if self.L[i][:len(st)] == st][0]

def plan_attn(sg, qc, h):
    isx = lambda si: sg.L[sg.steps[si]][0] == 'X'
    for t in range(16):
        i = sg.find(('X', h, t)); si = sg.steps.index(i); l = si * 16
        if t == 0:
            assert not isx(si + 1)
            it = rowmax(SB[0], vT0) + ['v_sub_f32 v%d, 0, v%d' % (vT0, vT0)]
            it += ['v_add_f32 v%d, v%d, v%d' % (SB[0] + j, SB[0] + j, vT0) for j in range(16)]
            for ex, rest in softmax_pairs(0): it += ex + rest
            it += ['v_add_f32 v%d, v%d, v%d' % (vL, vTA, vTB)]
            it += ['v_mov_b32 v%d, v%d' % (NEGM + j, vT0) for j in range(16)]
            it += ['v_add_f32 v%d, v%d, v%d' % (SB[1] + j, SB[1] + j, vT0) for j in range(16)]
            sg.put(it, l + 10, l + 26)
            continue
        l0 = l - 8 if (not isx(si - 1) and t != 1) else l
        l1 = l + 24 if (t < 14 and not isx(si + 1)) else l + 16
        if t == 15: l0, l1 = l - 16, l + 8
        gr = []
        for ex, rest in softmax_pairs(t): gr += [ex, rest]
        if t == 15 and qc:
            sg.put(gr[:6], l0, l0 + 6); sg.put(gr[6:], l, l + 8)
        else: sg.put(gr, l0, l1)
        sg.add(l1 - 1, check(t, h))
        if t == 15:
            sg.add(l + 9, ['v_mov_b32 v%d, v%d' % (vT1, vL)])
            sg.add(l + 10, ['v_permlane32_swap_b32 v%d, v%d' % (vL, vT1)])
            sg.add(l + 11, ['v_add_f32 v%d, v%d, v%d' % (vL, vL, vT1)])
            sg.add(l + 12, ['v_rcp_f32 v%d, v%d' % (vRL, vL)])
            if qc:
                sg.put(qconv(0, 3), l - 10, l - 5); sg.put(qconv(1, 3), l - 5, l); sg.put(qconv(2, 3) + qconv(3, 3), l + 8, l + 16)

def plan_epi(sg, h, l0):
    ep = epilogue(h); n = len(ep) * 3 // 4
    sg.put(ep[:n], l0 + 1, l0 + 26); sg.put(ep[n:], l0 + 42, l0 + 48)

FAKE = {}
def emit_steps(e, sg, s0, s1):
    L = sg.L
    for i in sg.steps[s0:s1]:
        st = L[i]
        e.comment('---- step %d : %s' % (i, st))
        ms = mfmas(st, sg.slot(i))
        ni = sg.nxt(i)
        nms = mfmas(L[ni], sg.slot(ni)) if ni is not None else []
        gaps = [list(sg.g.get((i, g), [])) for g in range(16)]
        tiles = []
        if sg.auto:
            if i > 0 and L[i - 1][0] == 'P' and i + 7 < len(L): tiles.append(i + 7)
            if i + 8 < len(L) and (L[i + 8][0] != 'P' or OPT['wpf']): tiles.append(i + 8)
        if OPT['wst'] > 1 and sg.rs == 'b' and 0 <= i - OPT['wst'] < 3:
            q = 3 * (i - OPT['wst'])
            gaps[8] = [('STAMP', q, 1)] + sg.prebar.get(i, []) + [('WAITV', sg.slot(ni)), ('STAMP', q + 1, 1), 's_barrier', ('STAMP', q + 2, 1)] + gaps[8]
        elif ni is not None: gaps[8] = sg.prebar.get(i, []) + [('WAITV', sg.slot(ni)), 's_barrier'] + gaps[8]
        d = flat([dma_items(L[tp], sg.slot(tp)) for tp in tiles])
        slots = [9, 11, 13, 15] if len(tiles) == 1 else [9, 10, 11, 12, 13, 14, 15, 15]
        if len(tiles) == 2: d = d[:6] + [d[6] + d[7]]
        if False:
            d = [[('STAMP', 2 * q + 1, 1)] + grp + [('STAMP', 2 * q + 2, 1)] for q, grp in enumerate(d)]
            gaps[0] = [('STAMP', 0, 1)] + gaps[0]
        for q, grp in enumerate(d): gaps[slots[q]] = grp + gaps[slots[q]]
        for g, m in enumerate(ms):
            if g % 2 == 0: e.wait_l({g, g + 1})
            if OPT['mf16']:
                import re
                dk, dlo = re.match(r'([va])\[(\d+)', m.d).groups(); dlo = int(dlo)
                cnt = FAKE.setdefault(m.d, [0, None])
                if m.c != m.d: cnt[0] = 0; cnt[1] = m.c
                par = cnt[0] & 1
                def sub(q):
                    d = vr(dk, dlo + 8 * par + 4 * q, 4)
                    c = d
                    if cnt[0] < 2 and cnt[1] is not None: c = '0' if cnt[1] == '0' else vr('v', NEGM, 4)
                    bk, blo = re.match(r'([va])\[(\d+)', m.b).groups()
                    return 'v_mfma_f32_16x16x32_bf16 %s, %s, %s, %s' % (d, vr('a', AF + 4 * (g % 8), 4), vr(bk, int(blo) ^ (4 * q), 4), c)
                e(sub(0)); m2 = sub(1); cnt[0] += 1
                its = gaps[g]; k = 0
                plain = all(isinstance(x, str) and x.startswith('v_') and 'vcc' not in x for x in its)
                k = len(its) // 2 if plain else 0
                gaps[g] = its[:k] + [m2] + its[k:]
            elif OPT['nomf'] == 1: pass
            elif OPT['nomf'] == 2: e('s_nop 7'); e('s_nop 7')
            else: e('v_mfma_f32_32x32x16_bf16 %s, %s, %s, %s' % (m.d, vr('a', AF + 4 * (g % 8), 4), m.b, m.c))
            j = g + PF
            if j < 16: emit_reads(e, ms[j], j)
            elif ni is not None:
                assert g >= 9
                emit_reads(e, nms[j - 16], j)
            for it in gaps[g]: emit_item(e, it)

def parse_order(txt, other, h):
    r = []; o = iter(other); t = 0
    for ch in txt:
        if ch == 'X': r.append(('X', h, t)); t += 1
        else: r.append(next(o))
    assert t == 16 and next(o, None) is None
    return r

def srd(e, r, nbytes):
    e('s_mov_b32 s%d, %d' % (r + 2, nbytes)); e('s_mov_b32 s%d, 0x00020000' % (r + 3))

def unit_bases(e, sp, sw, rb, ob, t):
    e('s_lshr_b32 s%d, s2, 4' % ob)
    e('s_lshl_b32 s%d, s3, 4' % rb); e('s_add_u32 s%d, s%d, s%d' % (rb, rb, ob)); e('s_mul_i32 s%d, s%d, %d' % (rb, rb, 32768 if LAY else 8 * 163840))
    e('s_mul_i32 s%d, s%d, %d' % (ob, ob, 128 * 2560))
    e('s_mul_i32 s%d, s3, 1280' % t); e('s_add_u32 s%d, s%d, s%d' % (ob, ob, t))
    e('s_lshr_b32 s%d, s%d, 1' % (t, sp)); e('s_mul_i32 s%d, s%d, %d' % (t, t, 1024 if LAY else 40960)); e('s_add_u32 s%d, s%d, s%d' % (rb, rb, t))
    e('s_mul_i32 s%d, s%d, %d' % (t, t, 80 if LAY else 2)); e('s_add_u32 s%d, s%d, s%d' % (ob, ob, t))
    e('s_and_b32 s%d, s%d, 1' % (t, sp)); e('s_lshl_b32 s%d, s%d, 7' % (t, t)); e('s_add_u32 s%d, s%d, s%d' % (ob, ob, t))
    e('s_mul_i32 s%d, s%d, %d' % (t, t, 4 * KS // 128 if LAY else 32)); e('s_add_u32 s%d, s%d, s%d' % (rb, rb, t))
    e('s_lshl_b32 s%d, s%d, 7' % (t, sw)); e('s_add_u32 s%d, s%d, s%d' % (rb, rb, t))
    e('s_mul_i32 s%d, s%d, %d' % (t, sw, 8 * 2560)); e('s_add_u32 s%d, s%d, s%d' % (ob, ob, t))

def gen_tail(e):
    e('s_waitcnt vmcnt(0)'); e.vq = []
    e('s_barrier')
    for it in flag(3): emit_item(e, it)
    e('s_memrealtime s[8:9]')
    add = one_lane([('VM', 'buffer_atomic_add v%d, off, %s, 0 offset:4 sc0' % (vCNT, vr('s', sDBG, 4)), 'add')])
    for c, sy in ((2, 0), (3, 0), (0, 1), (1, 2), (4, 3)):
        if c < 4:
            e('s_bitcmp1_b32 s%d, %d' % (sPEND, c)); e('s_cbranch_scc0 L_tn%d' % c)
        e.label('L_tp%d' % c)
        for it in poll(sy): emit_item(e, it)
        e('s_memrealtime s[10:11]')
        e('s_waitcnt vmcnt(0)'); e.vq = []
        for it in pcmp(): e(it)
        e('s_cbranch_scc1 L_tg%d' % c)
        e('s_waitcnt lgkmcnt(0)')
        e('s_sub_u32 s10, s10, s8'); e('s_cmp_lt_u32 s10, %d' % OPT['tmo']); e('s_cbranch_scc1 L_tp%d' % c)
        e('s_branch L_slow')
        e.label('L_tg%d' % c)
        for it in flat(rloads(c, 0, vLB)): emit_item(e, it)
        if c == 4:
            for it in add: emit_item(e, it)
        for it in flat(rsum(c, 0, 128)) + rout(c, 128, vOBS): emit_item(e, it)
        if c < 4:
            e.label('L_tn%d' % c); e.hist = []; e('s_nop 1')
    e.wait_v({'add'}); e('s_waitcnt lgkmcnt(0)')
    e('v_readfirstlane_b32 s10, v%d' % vCNT)
    e('s_and_b32 s11, s10, 15'); e('s_cmp_lg_u32 s11, 7'); e('s_cbranch_scc1 L_done')
    e('s_lshr_b32 s10, s10, 8'); e('s_branch L_rescue')
    e.label('L_slow'); e.hist = []
    for it in add: emit_item(e, it)
    e('s_waitcnt vmcnt(0)')
    e('v_readfirstlane_b32 s10, v%d' % vCNT)
    e('s_and_b32 s11, s10, 15'); e('s_lshr_b32 s10, s10, 8'); e('s_cmp_eq_u32 s11, 7'); e('s_cselect_b32 s10, s10, 0')
    e('s_lshl_b32 s11, 1, s%d' % sDBO); e('s_or_b32 s10, s10, s11'); e('s_lshl_b32 s11, s11, 8')
    e('v_mov_b32 v%d, s11' % vCNT); e('s_mov_b32 s%d, 8' % (sDBG + 2))
    for it in one_lane([('VM', 'buffer_atomic_or v%d, off, %s, 0 offset:4 sc0' % (vCNT, vr('s', sDBG, 4)), 'add')]): emit_item(e, it)
    e('s_waitcnt vmcnt(0)'); e.vq = []
    e('v_readfirstlane_b32 s11, v%d' % vCNT)
    e('s_and_b32 s11, s11, 15'); e('s_cmp_lg_u32 s11, 8'); e('s_cbranch_scc1 L_done')
    e.label('L_rescue'); e.hist = []
    e('s_and_b32 s10, s10, 255'); e('s_cmp_eq_u32 s10, 0'); e('s_cbranch_scc1 L_done')
    e('s_ff1_i32_b32 s11, s10'); e('s_bitset0_b32 s10, s11'); e('s_mov_b32 s8, 0')
    e.label('L_rw'); e.hist = []
    unit_bases(e, 11, 8, sRB, sOB, 9)
    for c in range(5):
        for it in flat(rloads(c, 0, vLB)) + flat(rsum(c, 0, 128)) + rout(c, 128, vOBS): emit_item(e, it)
    e('s_waitcnt vmcnt(0)'); e.vq = []
    e('s_add_u32 s8, s8, 1'); e('s_cmp_lt_u32 s8, 4'); e('s_cbranch_scc1 L_rw')
    e('s_branch L_rescue')
    e.label('L_done'); e.hist = []

def gen_k1(e):
    e.label(K1)
    e('s_cmp_ge_u32 s2, 256'); e('s_cbranch_scc1 L_end')
    e('s_load_dwordx16 s[36:51], s[0:1], 0')
    e('s_load_dwordx4 s[52:55], s[0:1], 64')
    e('s_load_dwordx2 s[56:57], s[0:1], 96')
    if OPT['fuse']:
        e('s_load_dwordx2 %s, s[0:1], 80' % vr('s', sOUT, 2)); e('s_load_dwordx2 %s, s[0:1], 88' % vr('s', sDBG, 2))
        e('s_load_dwordx2 %s, s[0:1], 96' % vr('s', sWA, 2)); e('s_memrealtime %s' % vr('s', sTAG, 2))
    if OPT['stamp']:
        stamp(e, 0)
    L = 32
    e('v_lshrrev_b32 v%d, 6, v0' % L)
    e('v_and_b32 v0, 63, v0')
    e('v_readfirstlane_b32 s35, v%d' % L)
    lane = 0
    r_, c_, hf, g1, s_, pos_, t0, t1, cs, ss = range(33, 43)
    e('v_bfe_u32 v%d, v0, 2, 2' % r_); e('v_and_b32 v%d, 3, v0' % c_); e('v_lshrrev_b32 v%d, 5, v0' % hf)
    e('v_bfe_u32 v%d, v0, 4, 1' % g1); e('v_lshrrev_b32 v%d, 4, v0' % s_); e('v_and_b32 v%d, 15, v0' % pos_)
    def swap2(dst, src):
        e('v_and_b32 v%d, 1, v%d' % (t0, src)); e('v_lshlrev_b32 v%d, 1, v%d' % (t0, t0))
        e('v_lshrrev_b32 v%d, 1, v%d' % (t1, src)); e('v_or_b32 v%d, v%d, v%d' % (dst, t0, t1))
    swap2(cs, c_); swap2(ss, s_)
    e('v_mul_u32_u24 v%d, %d, v%d' % (t0, PITCH, r_))
    e('v_lshl_add_u32 v%d, v%d, 8, v%d' % (t0, hf, t0))
    e('v_lshl_add_u32 v%d, v%d, 5, v%d' % (t0, g1, t0))
    e('v_lshl_add_u32 v%d, v%d, 3, v%d' % (vTV, c_, t0))
    e('v_lshl_add_u32 v%d, v%d, 3, v%d' % (vTS, cs, t0))
    e('v_and_b32 v%d, 7, v0' % t0); e('v_mul_u32_u24 v%d, %d, v%d' % (t0, PITCH, t0))
    e('v_bfe_u32 v%d, v0, 3, 2' % t1)
    e('v_lshl_add_u32 v%d, v%d, 8, v%d' % (t0, t1, t0))
    e('v_xor_b32 v%d, v%d, v%d' % (t1, t1, hf))
    e('v_lshl_add_u32 v%d, v%d, 4, v%d' % (vKE, t1, t0))
    e('v_xor_b32 v%d, 2, v%d' % (t1, t1))
    e('v_lshl_add_u32 v%d, v%d, 4, v%d' % (vKO, t1, t0))
    for b in (vTS, vTV, vKE, vKO):
        e('v_add_u32 v%d, %d, v%d' % (b + 1, 3 * SLOT, b)); e('v_add_u32 v%d, %d, v%d' % (b + 2, 6 * SLOT, b))
    e('s_lshr_b32 s58, s35, 1'); e('s_lshl_b32 s58, s58, 4'); e('s_and_b32 s59, s35, 1'); e('s_lshl_b32 s59, s59, 1')
    e('s_add_u32 s58, s58, s59')
    e('v_lshlrev_b32 v%d, 4, v%d' % (pos_, pos_)); e('v_add_u32 v%d, %d, v%d' % (t1, BIAS, pos_))
    e('v_lshl_add_u32 v%d, v%d, 2, s58' % (t0, s_))
    e('v_lshl_add_u32 v%d, v%d, 8, v%d' % (vOV, t0, t1)); e('v_add_u32 v%d, %d, v%d' % (vOV + 1, (256 - PITCH) & 0xffffffff, vOV))
    e('v_mul_u32_u24 v%d, 1280, v%d' % (vOWO, t0)); e('v_add_u32 v%d, v%d, v%d' % (vOWO, vOWO, t1))
    e('v_add_u32 v%d, %d, v%d' % (vOWO + 1, (1280 - PITCH) & 0xffffffff, vOWO))
    e('v_lshl_add_u32 v%d, v%d, 2, s58' % (t0, ss))
    e('v_lshl_add_u32 v%d, v%d, 13, v%d' % (vON, t0, t1)); e('v_add_u32 v%d, %d, v%d' % (vON + 1, 8192 - PITCH, vON))
    e('s_lshl_b32 s59, s35, 1')
    e('v_lshl_add_u32 v%d, v%d, 3, s59' % (t0, s_))
    e('v_lshlrev_b32 v%d, 4, v%d' % (t1, s_)); e('v_xor_b32 v%d, v%d, v%d' % (t1, t1, pos_)); e('v_add_u32 v%d, %d, v%d' % (t1, BIAS, t1))
    e('v_lshl_add_u32 v%d, v%d, 8, v%d' % (vOK, t0, t1)); e('v_add_u32 v%d, %d, v%d' % (vOK + 1, (256 - PITCH) & 0xffffffff, vOK))
    e('s_mul_i32 s59, s35, 40960')
    if LAY: e('s_lshl_b32 s58, s35, 10'); e('v_lshl_add_u32 v%d, v0, 4, s58' % vST)
    else: e('v_lshl_add_u32 v%d, v0, 4, s59' % vST)
    e('v_lshrrev_b32 v%d, 3, v0' % t0); e('v_mul_u32_u24 v%d, 1280, v%d' % (t0, t0))
    e('v_and_b32 v%d, 7, v0' % t1); e('v_xor_b32 v%d, v%d, v%d' % (t1, t1, s_))
    e('v_lshl_add_u32 v%d, v%d, 4, v%d' % (t0, t1, t0)); e('v_add_u32 v%d, s59, v%d' % (vXO, t0))
    e('v_add_u32 v%d, %d, v%d' % (vXO + 2, 8 * 1280 - 1024, vXO)); e('v_add_u32 v%d, %d, v%d' % (vXO + 1, 16 * 1280 - PITCH, vXO))
    e('v_add_u32 v%d, %d, v%d' % (vXO + 3, 24 * 1280 - PITCH - 1024, vXO))
    e('s_mul_i32 s%d, s35, %d' % (sWV, 2 * PITCH))
    e('s_and_b32 s58, s2, 3'); e('s_lshl_b32 s58, s58, 1'); e('s_bfe_u32 s59, s2, 0x10003'); e('s_add_u32 s58, s58, s59')
    e('s_lshr_b32 s59, s2, 4')
    e('s_bfe_u32 s3, s2, 0x10002')
    e('s_waitcnt lgkmcnt(0)')
    e('s_cmp_eq_u32 s3, 0')
    e('s_cselect_b64 s[%d:%d], s[36:37], s[46:47]' % (sX, sX + 1))
    e('s_cselect_b64 s[%d:%d], s[38:39], s[48:49]' % (sK, sK + 1))
    e('s_cselect_b64 s[%d:%d], s[40:41], s[50:51]' % (sV, sV + 1))
    e('s_cselect_b64 s[%d:%d], s[42:43], s[52:53]' % (sN, sN + 1))
    e('s_cselect_b64 s[%d:%d], s[44:45], s[54:55]' % (sWO, sWO + 1))
    def addp(r, sreg):
        e('s_add_u32 s%d, s%d, s%d' % (r, r, sreg)); e('s_addc_u32 s%d, s%d, 0' % (r + 1, r + 1))
    def subb(r, x=0):
        e('s_sub_u32 s%d, s%d, %d' % (r, r, BIAS + x)); e('s_subb_u32 s%d, s%d, 0' % (r + 1, r + 1))
    e('s_mul_i32 s34, s59, 163840'); addp(sX, 34); srd(e, sX, 163840)
    e('s_lshl_b32 s34, s58, 10'); addp(sN, 34); subb(sN); srd(e, sN, 640 * 8192 + BIAS)
    XS = [2, 6, 3, 7, 4, 5, 6, 7, 8, 0]
    AS = lambda i: (8 + i) % 9
    def issue(st, slot):
        for it in flat(dma_items(st, slot)): emit_item(e, it)
    for st in (('x', 0), ('W', 0, 0), ('x', 1), ('x', 2), ('W', 0, 1), ('x', 3), ('x', 4), ('x', 5), ('W', 0, 2)):
        issue(st, XS[st[1]] if st[0] == 'x' else AS(st[2]))
    e('v_mul_u32_u24 v%d, %d, v%d' % (t0, PITCH, g1)); e('v_bfe_u32 v%d, v0, 3, 1' % t1); e('v_lshl_add_u32 v%d, v%d, 10, v%d' % (t0, t1, t0))
    e('v_and_b32 v%d, 7, v0' % t1); e('v_lshl_add_u32 v%d, v%d, 7, v%d' % (t0, t1, t0)); e('v_add_u32 v%d, s%d, v%d' % (t0, sWV, t0))
    e('v_bfe_u32 v%d, v0, 1, 2' % t1); e('v_xor_b32 v%d, v%d, v%d' % (t1, t1, hf))
    e('v_lshl_add_u32 v%d, v%d, 4, v%d' % (vXR, t1, t0))
    e('v_xor_b32 v%d, 2, v%d' % (t1, t1)); e('v_lshl_add_u32 v%d, v%d, 4, v%d' % (vXR + 1, t1, t0))
    for j in (1, 2):
        e('v_add_u32 v%d, %d, v%d' % (vXR + 2 * j, 3 * j * SLOT, vXR)); e('v_add_u32 v%d, %d, v%d' % (vXR + 2 * j + 1, 3 * j * SLOT, vXR + 1))
    e('s_lshl_b32 s34, s59, 22'); e('s_lshl_b32 s35, s58, 19'); e('s_add_u32 s34, s34, s35')
    if OPT['kvsame']: e('s_mov_b32 s34, 0')
    RB = 1024 if OPT['rot'] else 0
    addp(sK, 34); subb(sK, RB); srd(e, sK, 4 * 131072 + BIAS + RB)
    addp(sV, 34); subb(sV, RB); srd(e, sV, 4 * 131072 + BIAS + RB)
    e('s_mul_i32 s34, s58, %d' % (512 * 1280)); addp(sWO, 34); subb(sWO); srd(e, sWO, 512 * 1280 + BIAS)
    e('s_and_b32 s92, s59, 3'); e('s_mul_i32 s92, s92, 163840'); e('s_lshr_b32 s93, s59, 2'); e('s_mul_i32 s93, s93, 10240')
    e('s_add_u32 s92, s92, s93'); e('s_add_u32 s92, s92, %d' % BIAS)
    e('s_mov_b32 s%d, 0x%x' % (sTHR, fbits(65536.0)))
    e('s_mov_b32 s%d, 0x%x' % (sC, fbits(math.log2(math.e) / math.sqrt(128.0))))
    e('s_lshl_b32 s34, s3, 4'); e('s_add_u32 s34, s34, s59')
    if OPT['fuse']:
        srd(e, sOUT, 16 * 128 * 2560); srd(e, sWA, 0x4000000)
        e('s_lshl_b32 s35, s34, 3'); addp(sDBG, 35); srd(e, sDBG, 8)
        e('s_cmp_eq_u32 s%d, 0' % sWV); e('s_cselect_b32 s%d, 8, 0' % (sDBG + 2))
        e('s_lshl_b32 s%d, s34, 9' % sFB); e('s_add_u32 s%d, s%d, %d' % (sFB, sFB, FLAG0))
        e('s_lshl_b32 s94, s58, 3'); e('s_add_u32 s94, s94, s%d' % sFB)
        e('s_mov_b32 s%d, s58' % sDBO)
        e('s_or_b32 s%d, s%d, 1' % (sTAG, sTAG))
        e('s_lshr_b32 s35, s%d, 12' % sWV)
        unit_bases(e, 58, 35, sRB, sOB, 93)
    e('s_lshl_b32 s34, s34, 3'); e('s_add_u32 s34, s34, s58')
    e('s_mov_b32 s95, s59')
    if OPT['rot'] == 1: e('s_lshr_b32 s95, s2, 3'); e('s_and_b32 s95, s95, 15'); e('s_lshl_b32 s95, s95, 13')
    if OPT['rot'] == 2: e('s_lshr_b32 s95, s2, 4'); e('s_add_u32 s95, s95, s2'); e('s_and_b32 s95, s95, 15'); e('s_lshl_b32 s95, s95, 13')
    e('s_mul_i32 s34, s34, %d' % (4096 if LAY else 163840)); addp(sWS, 34); srd(e, sWS, 39 * KS + 4096 if LAY else 163840)
    W = lambda h, a, b: [('W', h, i) for i in range(a, b)]
    G = lambda c, a, b: [('G', c, i) for i in range(a, b)]
    pat = lambda l: ''.join('n' + 'X' * k for k in l)
    P12 = pat([1, 1, 2, 1, 2, 1, 1, 2, 1, 2, 1, 1]); P13 = pat([1, 1, 1, 2, 1, 1, 1, 2, 1, 1, 2, 1, 1])
    BD = [parse_order(P12, W(1, 0, 10) + W(2, 0, 2), 0), parse_order(P12, W(2, 2, 10) + W(3, 0, 4), 1),
          parse_order(P12, W(3, 4, 10) + G(0, 0, 4) + G(1, 0, 2), 2),
          parse_order(P13, G(1, 2, 4) + G(2, 0, 4) + G(3, 0, 4) + G(2, 4, 6) + G(3, 4, 5), 3),
          G(3, 5, 6) + G(2, 6, 8) + G(3, 6, 8) + G(0, 4, 8) + G(1, 4, 8) + G(4, 0, 8)]
    B0 = flat(BD); b0 = [sum(len(x) for x in BD[:k]) * 16 for k in range(6)]
    sa = Seg([('W', 0, i) for i in range(10)] + B0[:9], 10, 8, 'a', auto_dma=False)
    def xr(i): return [('WAITV', XS[i])] + x_reads(i, XS[i])
    def dm(st, slot, l, after=None):
        d = dma_items(st, slot)
        if after is not None: d[0] = [('WAITL', 'xr%d' % after)] + d[0]
        sa.put(d, l, l + 4)
    for it in xr(0): emit_item(e, it)
    e.wait_v({AS(0)}); e('s_barrier')
    m0 = mfmas(('W', 0, 0), AS(0))
    for j in range(PF): emit_reads(e, m0[j], j)
    e.wait_l({'xr0'}); issue(('W', 0, 3), AS(3))
    stamp(e, 1)
    sa.add(0, xr(1)); sa.add(2, xr(2)); dm(('x', 6), XS[6], 3, 1); dm(('W', 0, 4), AS(4), 7, 2)
    sa.add(9, xr(3)); sa.add(11, xr(4)); dm(('x', 7), XS[7], 12, 3); dm(('W', 0, 5), AS(5), 16, 4)
    sa.add(17, xr(5)); dm(('W', 0, 6), AS(6), 20, 5); dm(('x', 8), XS[8], 16 + 9)
    dm(('x', 9), XS[9], 32 + 9); sa.add(32 + 13, xr(6)); dm(('W', 0, 7), AS(7), 48 + 1, 6)
    dm(B0[1], 1, 48 + 9); sa.add(48 + 13, xr(7)); dm(('W', 0, 8), AS(8), 64 + 1, 7)
    sa.add(64 + 9, xr(8)); dm(('W', 0, 9), AS(9), 64 + 12, 8); sa.add(80 + 1, xr(9)); dm(B0[0], 0, 80 + 4, 9)
    dm(B0[2], 2, 80 + 9)
    dm(B0[3], 3, 80 + 13)
    for j in range(4, 8): sa.put(dma_items(B0[j], j), (j + 2) * 16 + 9, (j + 2) * 16 + 16)
    sa.put(qconv(0, 0), 144 + 6, 144 + 10); sa.put(qconv(1, 0), 144 + 10, 144 + 14); sa.put(qconv(2, 0), 144 + 14, 144 + 16)
    if OPT['fuse']:
        sa.add(90, ['v_mov_b32 v64, s%d' % sTAG, 'v_accvgpr_write_b32 a192, v64', 'v_accvgpr_write_b32 a193, 0'])
        sa.add(93, one_lane([('VM', 'buffer_atomic_cmpswap a[192:193], off, %s, 0 sc0' % vr('s', sDBG, 4), 'tag')]), front=True)
    emit_steps(e, sa, 0, 10)
    for it in qconv(3, 0): e(it)
    sg = Seg(B0, len(B0), 0, 'b', auto_dma=False)
    TL, lead = timeline(''.join(x[0] for x in B0), [16 * k + 1 for k in (OPT['wpf'], OPT['wpf'] + OPT['pind'], OPT['wpf'] + 2 * OPT['pind'])] if OPT['wpf'] else [])
    print('lead', lead)
    put_plan(sg, TL, B0, sg.slot, 0)
    at = lambda *st: sg.find(st) * 16
    for h in range(4):
        plan_attn(sg, False, h)
        if h > 0: plan_epi(sg, h - 1, b0[h])
        sg.add(b0[h], [('STAMP', 2 + h)])
    sg.add(b0[4], [('STAMP', 6)])
    def window(f, a, b):
        n = (b + 12 - a - 7) // 4
        for T in range(4):
            l0 = max(a + 7 + n * T, a + 4 * T + 7); l1 = min(a + 7 + n * (T + 1), b + 4 * T - 1)
            sg.put(f(T), l0, l1)
    window(lambda T: qconv(T, 1), at('W', 1, 9), at('W', 2, 0))
    window(lambda T: qconv(T, 2), at('W', 2, 9), at('W', 3, 0))
    allT = lambda f, c, Ts=range(4): flat([f(c, T) for T in Ts])
    sg.put(flat([qconv(T, 3) for T in range(4)]), at('W', 3, 9) + 19, at('G', 0, 3))
    sg.put(allT(park, 0), at('G', 0, 3) + 19, b0[3])
    sg.put(allT(park, 1), at('G', 1, 3) + 32, at('G', 3, 0) - 1)
    if OPT['fuse']:
        l = b0[1]
        sg.add(l + 1, ['v_accvgpr_read_b32 v%d, a192' % vT0, 's_lshr_b32 s%d, s%d, 10' % (sTMP, sWV), 's_add_u32 s%d, s%d, %d' % (sTMP, sTMP, TAGL)])
        sg.add(l + 2, ['v_mov_b32 v%d, s%d' % (vT1, sTMP), 'v_readfirstlane_b32 s%d, v%d' % (sTMP, vT0)])
        sg.add(l + 3, ['s_cmp_eq_u32 s%d, 0' % sTMP, 's_cselect_b32 s%d, s%d, s%d' % (sTMP, sTAG, sTMP), 'v_mov_b32 v%d, s%d' % (vT0, sTMP)])
        sg.add(l + 4, [('LDS', 'ds_write_b32 v%d, v%d' % (vT1, vT0), 'tagw')])
        sg.add(l + 7, [('WAITL', 'tagw')])
        l = b0[2]
        sg.add(l + 1, ['v_mov_b32 v%d, %d' % (vT1, TAGL)])
        sg.add(l + 2, [('LDS', 'ds_read_b32 v%d, v%d' % (vT0, vT1), 'tagr')])
        sg.add(l + 6, [('WAITL', 'tagr'), 'v_readfirstlane_b32 s%d, v%d' % (sTAG, vT0)])
        sg.add(l + 8, ['s_xor_b32 s%d, s%d, 0x5bd1e995' % (sTAG + 1, sTAG), 's_brev_b32 s%d, s%d' % (sTAG + 1, sTAG + 1)])
    r = lambda k: b0[4] + 16 * k
    ep = epilogue(3)
    sg.put(ep[:48], r(0) + 2, r(1) - 1); sg.put(ep[48:], r(1), r(2) - 1)
    sg.put(unpark(0, 2), r(-2), r(-1)); sg.put(unpark(0, 0), r(-1) + 9, r(0) + 1)
    sg.put(allT(unpark, 1), r(2), r(3) + 3)
    sg.put(unpark(0, 1) + unpark(0, 3), r(3) + 3, r(5) - 1)
    n = OPT['sg']; l = r(3) + 3
    sg.put(gout(2), l, l + n); l = max(l + n, r(5) + 3)
    sg.put(gout(3), l, l + n); l = max(l + n, r(9) + 3)
    cv, sts = gout(0, True)
    sg.put(cv, l, min(l + n - 2, r(13) - 1)); sg.put(sts, l + n // 8, l + n + n // 8); l = max(l + n, r(13) + 3)
    sg.put(gout(1), l, l + n)
    if OPT['fuse']:
        sg.put(flat(red_setup()[:-1]), r(9), r(11)); sg.add(r(11), red_setup()[-1])
        for sy, (fs, tg) in enumerate(((OPT['f0'], 'st3'), (OPT['f1'], 'st0'), (OPT['f2'], 'st1'))):
            st = r(fs) // 16
            sg.prebar[st] = [('WAITV', tg)]; sg.add(st * 16 + 8, flag(sy), front=True)
        if OPT['inl']:
            p = r(OPT['p0'])
            sg.add(p, poll(0)); sg.add(p + 24, pcheck(12))
            sg.put(rloads(2, 0, vLM) + rloads(3, 32, vLM), p + 25, p + 57)
            q = r(OPT['p1']) + 10
            sg.add(q, poll(1))
            p = q + 6
            sg.put(rsum(2, 0, 128) + rsum(3, 32, 144), p, p + 16)
            sg.put(rout(2, 128, vOM), p + 12, p + 20); sg.put(rout(3, 144, vOM), p + 21, p + 29)
            sg.add(p + 30, pcheck(1)); sg.put(rloads(0, 64, vLM), p + 31, p + 39)
    if OPT['wst'] == 1:
        for k, q in enumerate((0, 3, 5, 7, 9, 11, 13, 16, 19)): sg.add(r(q), [('STAMP', k, 1)])
    go = gout(4); n = len(go) // 4
    sg.put(go[:n], r(20) + 7, r(20) + 11); sg.put(go[n:2 * n], r(20) + 11, r(20) + 15)
    emit_steps(e, sg, 0, len(B0))
    for it in go[2 * n:]:
        for x in (it if isinstance(it, list) else [it]): emit_item(e, x)
    if OPT['fuse'] and OPT['inl']:
        for it in flat(rsum(0, 64, 128)) + rout(0, 128, vOM): emit_item(e, it)
    stamp(e, 7)
    if OPT['fuse']: gen_tail(e)
    if OPT['stamp']:
        e('s_waitcnt vmcnt(0)'); stamp(e, 8)
        e('s_waitcnt lgkmcnt(0)')
        e('s_cmp_lg_u32 s%d, 0' % sWV); e('s_cbranch_scc1 L_end')
        e('s_load_dwordx2 s[56:57], s[0:1], 96'); e('s_waitcnt lgkmcnt(0)')
        e('s_lshl_b32 s34, s2, 7'); e('s_add_u32 s34, s34, 0x4000000'); addp(56, 34); srd(e, 56, 128)
        for i in range(12):
            e('v_mov_b32 v%d, s%d' % (32 + i, 60 + 2 * i))
            e('v_mov_b32 v%d, s%d' % (48 + i, 88 if i == 0 else 36 + 2 * min(i, 9)))
        e('v_mov_b32 v64, 0')
        for i in (0, 1, 2, 4, 5, 6): e('buffer_store_dwordx4 v[%d:%d], v64, s[56:59], 0 offen offset:%d' % (32 + 4 * i, 35 + 4 * i, 16 * i))
    e.label('L_end')
    e('s_endpgm')
    for t in (1, 2, 15): emit_rare(e, t, [u for u in RARE if (u % 16 == 15) == (t == 15) and (u ^ t) & 1 == 0])

def gen_k2(e):
    e.label(K2)
    e.hist = []; e.lq = []; e.vq = []
    e('s_cmp_ge_u32 s2, 1280'); e('s_cbranch_scc1 L_end2')
    e('s_load_dwordx2 s[4:5], s[0:1], 96'); e('s_load_dwordx2 s[8:9], s[0:1], 80')
    e('s_mul_hi_u32 s12, s2, 0xcccccccd'); e('s_lshr_b32 s12, s12, 3')
    e('s_mul_i32 s13, s12, 10'); e('s_sub_u32 s13, s2, s13')
    e('s_and_b32 s14, s12, 3'); e('s_lshr_b32 s15, s12, 2')
    e('v_and_b32 v1, 7, v0'); e('v_bfe_u32 v2, v0, 3, 3'); e('v_lshrrev_b32 v3, 6, v0')
    e('v_lshl_add_u32 v1, v3, 3, v1')
    e('v_lshlrev_b32 v4, 4, v1'); e('v_lshl_add_u32 v4, v2, 9, v4')
    e('v_mul_u32_u24 v5, 2560, v1'); e('v_lshl_add_u32 v5, v2, 4, v5')
    e('s_mul_i32 s16, s14, 40960'); e('s_lshl_b32 s17, s13, 12'); e('s_add_u32 s16, s16, s17')
    e('s_mul_i32 s17, s15, %d' % (8 * 163840)); e('s_add_u32 s16, s16, s17')
    e('s_and_b32 s18, s15, 15'); e('s_lshl_b32 s18, s18, 2'); e('s_add_u32 s18, s18, s14'); e('s_mul_i32 s18, s18, %d' % (32 * 2560))
    e('s_lshr_b32 s19, s15, 4'); e('s_mul_i32 s19, s19, 1280'); e('s_add_u32 s18, s18, s19')
    e('s_lshl_b32 s19, s13, 7'); e('s_add_u32 s18, s18, s19')
    e('s_waitcnt lgkmcnt(0)')
    e('s_add_u32 s4, s4, s16'); e('s_addc_u32 s5, s5, 0'); srd(e, 4, 8 * 163840)
    srd(e, 8, 16 * 128 * 2560)
    for p in range(8):
        e('s_mov_b32 s20, %d' % (p * 163840))
        e('buffer_load_dwordx4 %s, v4, s[4:7], s20 offen' % vr('v', 8 + 4 * p, 4), tag=p)
    e('v_add_u32 v5, s18, v5')
    e('s_mov_b32 s21, 0xffff0000')
    for p in range(8):
        e.wait_v({p})
        for i in range(4):
            src = 8 + 4 * p + i
            if p == 0:
                e('v_lshlrev_b32 v%d, 16, v%d' % (40 + 2 * i, src)); e('v_and_b32 v%d, s21, v%d' % (41 + 2 * i, src))
            else:
                e('v_lshlrev_b32 v6, 16, v%d' % src); e('v_and_b32 v7, s21, v%d' % src)
                e('v_add_f32 v%d, v%d, v6' % (40 + 2 * i, 40 + 2 * i)); e('v_add_f32 v%d, v%d, v7' % (41 + 2 * i, 41 + 2 * i))
    for i in range(4): e('v_cvt_pk_bf16_f32 v%d, v%d, v%d' % (8 + i, 40 + 2 * i, 41 + 2 * i))
    e('buffer_store_dwordx4 v[8:11], v5, s[8:11], 0 offen')
    e.label('L_end2')
    e('s_endpgm')

def kd(name, nv, acc, ns=102):
    return '''.amdhsa_kernel %s
  .amdhsa_next_free_vgpr %d
  .amdhsa_next_free_sgpr %d
  .amdhsa_accum_offset %d
  .amdhsa_group_segment_fixed_size 0
  .amdhsa_kernarg_size 104
  .amdhsa_user_sgpr_count 2
  .amdhsa_user_sgpr_kernarg_segment_ptr 1
  .amdhsa_system_sgpr_workgroup_id_x 1
.end_amdhsa_kernel
''' % (name, nv, ns, acc)

def main():
    ref = open('cdna_kernels/%s.s.ref' % NAME).read().split('\n')
    head = [l for l in ref if l.startswith(';') and '@launch' not in l]
    e = Em()
    for l in head: e.raw(l)
    if OPT['fuse'] and not OPT['stamp']:
        e.raw('; @launch grid=(256,1,1) block=(256,1,1) lds=%d' % LDS_BYTES)
    else:
        e.raw('; @launch kernel=%s grid=(256,1,1) block=(256,1,1) lds=%d' % (K1, LDS_BYTES))
    if not OPT['fuse']: e.raw('; @launch kernel=%s grid=(1280,1,1) block=(256,1,1) lds=0' % K2)
    e.raw('.amdgcn_target "amdgcn-amd-amdhsa--gfx950"'); e.raw('.text')
    for n, g in ((K1, gen_k1), (K2, gen_k2))[:1 if OPT['fuse'] else 2]:
        e.raw('.globl %s' % n); e.raw('.p2align 8'); e.raw('.type %s,@function' % n)
        g(e)
    e.raw('.section .rodata,"a"'); e.raw('.p2align 6'); e.raw(kd(K1, 512, 256))
    if not OPT['fuse']: e.raw('.p2align 6'); e.raw(kd(K2, 48, 48, 32))
    open(sys.argv[1], 'w').write(e.text())
    print('pads', e.npad, 'lines', len(e.out))
main()
```
